```python
import torch

def _softmax(x, axis=-1):
    return torch.softmax(x, dim=axis)
def _gelu(x):
    return torch.nn.functional.gelu(x, approximate="tanh")
def _silu(x):
    return torch.nn.functional.silu(x)
def _sigmoid(x):
    return torch.sigmoid(x)
def _layernorm(x, axis=-1, eps=1e-5):
    m = x.mean(dim=axis, keepdim=True)
    v = x.var(dim=axis, keepdim=True, unbiased=False)
    return (x - m) / torch.sqrt(v + eps)
def _scatter_add(tgt, idx, src, axis=0):
    return tgt.clone().index_add_(axis, idx, src)
def _segment_sum(src, seg, n):
    out = torch.zeros((n,) + src.shape[1:], dtype=src.dtype)
    return out.index_add_(0, seg, src)
def _pad(x, pw):
    flat = tuple(v for pair in reversed(pw) for v in pair)
    return torch.nn.functional.pad(x, flat)

kernel_name = 'parallel_sum__softmax_full_mha__glu_gated_swiglu__prompt'

def setup_inputs():

    _w = (lambda a: (lambda t: t.to(torch.bfloat16) if t.is_floating_point() else t)(torch.as_tensor(a)))
    def _A_setup():
        B, S, D = 1, 2048, 448
        return {
            "x": _w((lambda *s: torch.randn(*s, dtype=torch.bfloat16) * 0.05)(B, S, D)),
            "wqkv": _w((lambda *s: torch.randn(*s, dtype=torch.bfloat16) * 0.05)(D, 3 * D)),
            "wo": _w((lambda *s: torch.randn(*s, dtype=torch.bfloat16) * 0.05)(D, D)),
        }
    _A_in = _A_setup()

    def _B_setup():
        B, S, D, F = 1, 2048, 448, 1792
        return {
            "x": _w((lambda *s: torch.randn(*s, dtype=torch.bfloat16) * 0.05)(B, S, D)),
            "w1": _w((lambda *s: torch.randn(*s, dtype=torch.bfloat16) * 0.4)(D, F) * (2.0 / D) ** 0.5),
            "w3": _w((lambda *s: torch.randn(*s, dtype=torch.bfloat16) * 0.4)(D, F) * (2.0 / D) ** 0.5),
            "w2": _w((lambda *s: torch.randn(*s, dtype=torch.bfloat16) * 0.4)(F, D) * (2.0 / F) ** 0.5),
        }
    _B_in = _B_setup()

    return {
        "A_x": _A_in["x"],
        "A_wqkv": _A_in["wqkv"],
        "A_wo": _A_in["wo"],
        "B_x": _B_in["x"],
        "B_w1": _B_in["w1"],
        "B_w3": _B_in["w3"],
        "B_w2": _B_in["w2"],
    }

def reference(A_x, A_wqkv, A_wo, B_x, B_w1, B_w3, B_w2):
    def _A_ref(x, wqkv, wo):
        B, S, D = x.shape
        H = 16; Dh = D // H
        qkv = (lambda x, *d: x.permute(*d))((x @ wqkv).reshape(B, S, 3, H, Dh), 2, 0, 3, 1, 4)
        q, k, v = qkv[0], qkv[1], qkv[2]
        scale = Dh ** -0.5
        scores = torch.einsum("bhqd,bhkd->bhqk", q, k) * scale
        p = _softmax(scores, axis=-1)
        o = torch.einsum("bhqk,bhkd->bhqd", p, v)
        return (lambda x, *d: x.permute(*d))(o, 0, 2, 1, 3).reshape(B, S, D) @ wo

    def _B_ref(x, w1, w3, w2):
        gate = torch.einsum("bsd,df->bsf", x, w1)
        up = torch.einsum("bsd,df->bsf", x, w3)
        h = _silu(gate) * up
        out = torch.einsum("bsf,fd->bsd", h, w2)
        return out

    x = A_x
    xn = _layernorm(x, axis=-1)
    return x + _A_ref(xn, A_wqkv, A_wo) + _B_ref(xn, B_w1, B_w3, B_w2)
```

```python
import re


class Asm:
    def __init__(self):
        self.lines = []
        self.vm_ops = []

    def __call__(self, text):
        for ln in text.strip("\n").split("\n"):
            ln = ln.strip()
            if ln:
                self.lines.append(ln)

    def label(self, name):
        self.lines.append(name + ":")

    def comment(self, text):
        self.lines.append("; " + text)

    def vm(self, text, tag=None):
        self(text)
        self.vm_ops.append(tag)

    def vm_count_after(self, tag):
        idx = [i for i, t in enumerate(self.vm_ops) if t == tag]
        assert idx, f"no vm op tagged {tag}"
        return len(self.vm_ops) - 1 - idx[-1]

    def vm_wait(self, tag, extra=""):
        n = self.vm_count_after(tag)
        assert n <= 63, n
        self(f"s_waitcnt vmcnt({n}){extra}")

    def text(self):
        out = []
        for ln in self.lines:
            if ln.endswith(":") or ln.startswith("."):
                out.append(ln)
            else:
                out.append("    " + ln)
        return "\n".join(out) + "\n"


TRANS = ("v_exp_f32", "v_log_f32", "v_rcp_f32", "v_rsq_f32", "v_sqrt_f32", "v_sin_f32", "v_cos_f32",
         "v_rcp_iflag_f32", "v_exp_f16", "v_rcp_f16")


def regs_of(tok):
    tok = tok.strip()
    tok = tok.lstrip("-").strip("|")
    tok = re.sub(r"^abs\((.*)\)$", r"\1", tok)
    m = re.fullmatch(r"([vas])(\d+)", tok)
    if m:
        return {(m.group(1), int(m.group(2)))}
    m = re.fullmatch(r"([vas])\[(\d+):(\d+)\]", tok)
    if m:
        return {(m.group(1), i) for i in range(int(m.group(2)), int(m.group(3)) + 1)}
    if tok in ("vcc", "vcc_lo", "vcc_hi"):
        return {("vcc", 0)}
    if tok in ("exec", "exec_lo", "exec_hi"):
        return {("exec", 0)}
    if tok == "m0":
        return {("m0", 0)}
    return set()


class Ins:
    def __init__(self, text, idx):
        self.text = text
        self.idx = idx
        body = text.split(";")[0].strip()
        parts = body.split(None, 1)
        self.op = parts[0]
        rest = parts[1] if len(parts) > 1 else ""
        toks = [t.strip() for t in rest.split(",")] if rest else []
        self.mods = ""
        if toks:
            last = toks[-1].split()
            if last:
                toks[-1] = last[0]
                self.mods = " ".join(last[1:])
        self.toks = toks
        op = self.op
        self.is_mfma = op.startswith("v_mfma")
        self.is_valu = op.startswith("v_") and not self.is_mfma
        self.is_salu = op.startswith("s_")
        self.is_ds = op.startswith("ds_")
        self.is_vmem = op.startswith(("buffer_", "global_", "flat_"))
        self.is_trans = any(op.startswith(t) for t in TRANS)
        self.is_dot = op.startswith("v_dot")
        self.is_dpp = ("quad_perm" in text or "row_" in text or "_dpp" in op)
        self.is_perml = op.startswith("v_permlane")
        self.is_lds_dma = self.is_vmem and re.search(r"\blds\b", self.mods) is not None
        self.states = 1
        if op == "s_nop":
            self.states = int(toks[0], 0) + 1
        self.w = set()
        self.r = set()
        self.srcc = set()
        self.store_data = set()
        R = [regs_of(t) for t in toks]
        if self.is_mfma:
            self.w = R[0]
            self.r = R[1] | R[2] | R[3]
            self.ab = R[1] | R[2]
            self.srcc = R[3]
            self.passes = 8 if "32x32" in op else 4
        elif self.is_valu:
            if op.startswith("v_cmp"):
                self.w = R[0]
                self.r = set().union(*R[1:]) if len(R) > 1 else set()
            elif op.startswith("v_permlane") and "swap" in op:
                self.w = R[0] | R[1]
                self.r = R[0] | R[1]
            elif op.startswith(("v_add_co", "v_addc_co", "v_sub_co", "v_subb_co")):
                self.w = R[0] | R[1]
                self.r = set().union(*R[2:])
            else:
                self.w = R[0]
                self.r = set().union(*R[1:]) if len(R) > 1 else set()
                if op.startswith(("v_fmac", "v_dot2c", "v_writelane")) or "UNUSED_PRESERVE" in text:
                    self.r |= R[0]
                if op.startswith("v_cndmask") and len(R) == 3:
                    self.r |= {("vcc", 0)}
                if self.is_dpp:
                    self.r |= R[0]
        elif self.is_ds:
            if op.startswith(("ds_read", "ds_bpermute", "ds_permute", "ds_swizzle")):
                self.w = R[0]
                self.r = set().union(*R[1:]) if len(R) > 1 else set()
            else:
                self.r = set().union(*R)
        elif self.is_vmem:
            if op.startswith(("buffer_inv", "buffer_wbl2")):
                pass
            elif self.is_lds_dma:
                self.r = set().union(*R) | {("m0", 0)}
            elif "load" in op:
                self.w = R[0]
                self.r = set().union(*R[1:])
            elif "atomic" in op:
                self.r = set().union(*R)
                if "sc0" in self.mods:
                    self.w = R[0] if op.startswith("buffer") else R[0]
            else:
                self.r = set().union(*R)
                if "x4" in op or "x3" in op:
                    self.store_data = R[0] if op.startswith("buffer") else R[1]
        elif self.is_salu:
            if op.startswith(("s_cmp", "s_waitcnt", "s_nop", "s_barrier", "s_branch", "s_cbranch", "s_endpgm",
                              "s_sleep", "s_setprio", "s_bitcmp")):
                self.r = set().union(*R) if R else set()
            else:
                self.w = R[0] if R else set()
                self.r = set().union(*R[1:]) if len(R) > 1 else set()
                if "saveexec" in op:
                    self.w |= {("exec", 0)}


def vg(s):
    return {x for x in s if x[0] in ("v", "a")}


def sg(s):
    return {x for x in s if x[0] in ("s", "vcc")}


def required(p, c):
    need = 0
    if p.is_mfma:
        P = p.passes
        if c.is_mfma:
            if c.srcc & p.w:
                if not (c.srcc == p.w and c.passes == P):
                    need = max(need, P + 2)
            if c.ab & p.w:
                need = max(need, P + 4)
            if (c.w & p.w) and not (c.srcc == p.w):
                need = max(need, P + 2)
        elif c.is_valu:
            if (c.r | c.w) & p.w:
                need = max(need, P + 4)
            if c.w & p.srcc:
                need = max(need, P - 1)
        elif c.is_ds or c.is_vmem:
            if (c.r | c.w) & p.w:
                need = max(need, P + 4)
    if p.is_valu:
        pw = vg(p.w)
        if c.is_mfma and (c.r & pw):
            need = max(need, 2)
        if c.is_valu:
            if p.is_trans and not c.is_trans and (c.r & pw):
                need = max(need, 1)
            if (c.is_perml or c.is_dpp) and (c.r & pw):
                need = max(need, 2)
            if c.op.startswith(("v_readlane", "v_readfirstlane")) and (c.r & pw):
                need = max(need, 1)
            if p.is_dot and ((c.r | c.w) & pw):
                same = c.op == p.op
                if not same:
                    need = max(need, 3)
                else:
                    ab = regs_of(c.toks[1]) | regs_of(c.toks[2])
                    if ab & pw:
                        need = max(need, 3)
            if sg(p.w) & c.r:
                need = max(need, 4 if c.op.startswith(("v_readlane", "v_writelane")) else 2)
            if "sdwa" in p.op and "dst_sel:DWORD" not in p.text and (c.r & pw):
                need = max(need, 1)
        if c.is_vmem and (sg(p.w) & c.r):
            need = max(need, 5)
        if c.is_salu and (sg(p.w) & c.r):
            need = max(need, 1)
        if p.is_dot and (c.is_ds or c.is_vmem) and (c.r & pw):
            need = max(need, 3)
    if p.is_salu and ("m0", 0) in p.w and c.is_lds_dma:
        need = max(need, 1)
    if p.store_data:
        if c.is_valu and (c.w & p.store_data):
            need = max(need, 2)
        elif (c.w & p.store_data) and not c.is_salu:
            need = max(need, 1)
    return need


def check_hazards(text, name=""):
    ins = []
    labels = {}
    for ln in text.split("\n"):
        s = ln.split(";")[0].strip()
        if not s or s.startswith("."):
            continue
        if s.endswith(":"):
            labels[s[:-1]] = len(ins)
            continue
        ins.append(Ins(s, len(ins)))
    n = len(ins)
    preds = [[] for _ in range(n + 1)]
    for i, x in enumerate(ins):
        fall = x.op not in ("s_branch", "s_endpgm", "s_setpc_b64")
        if fall and i + 1 <= n:
            preds[i + 1].append(i)
        if x.op.startswith(("s_branch", "s_cbranch")):
            t = labels.get(x.toks[0])
            if t is not None:
                preds[t].append(i)
    MAXD = 20
    problems = []
    for i, c in enumerate(ins):
        stack = [(p, 0) for p in preds[i]]
        seen = {}
        while stack:
            j, d = stack.pop()
            if d >= MAXD or seen.get(j, 99) <= d:
                continue
            seen[j] = d
            p = ins[j]
            need = required(p, c)
            if need > d:
                problems.append(f"{name}: need {need} have {d}: [{p.text}] -> [{c.text}] (#{j}->#{i})")
            nd = d + p.states
            for q in preds[j]:
                stack.append((q, nd))
    return problems
```

```python
S, D, F = 2048, 448, 1792
WS_H = 0x0
WS_Q = 0x700000
WS_K = 0x8C0000
WS_V = 0xA80000
WS_O = 0xC40000
WS_P = 0xE40000
WS_FLAGS = 0x1200000
WS_SIZE = 268435456
SRD3 = 0x20000
QSCALE = (28 ** -0.5) * 1.4426950408889634
LOG2E = 1.4426950408889634

import struct
def f32(x):
    return "0x%08x" % struct.unpack("<I", struct.pack("<f", x))[0]

def kernel_header(name):
    return f""".globl {name}
.p2align 8
.type {name},@function
{name}:
"""

def kernel_desc(name, vgpr, accum, sgpr=102):
    return f""".amdhsa_kernel {name}
  .amdhsa_next_free_vgpr {vgpr}
  .amdhsa_next_free_sgpr {sgpr}
  .amdhsa_accum_offset {accum}
  .amdhsa_group_segment_fixed_size 0
  .amdhsa_kernarg_size 80
  .amdhsa_user_sgpr_count 2
  .amdhsa_user_sgpr_kernarg_segment_ptr 1
  .amdhsa_system_sgpr_workgroup_id_x 1
.end_amdhsa_kernel
"""

def srd(a, dst, ptr, size):
    a(f"s_mov_b32 s{dst}, s{ptr}")
    a(f"s_and_b32 s{dst+1}, s{ptr+1}, 0xffff")
    a(f"s_mov_b32 s{dst+2}, {size}")
    a(f"s_mov_b32 s{dst+3}, {hex(SRD3)}")
```

```python
from asmlib import Asm
from common import *

RING_SLOT = 16384
NSLOT = 9
MISC = 147456
LDS_K1 = 163840

sX, sWQ, sWF, sWS = 4, 8, 12, 16
sW, sRB, sG, sRT, sCH, sQ4 = 20, 21, 22, 23, 24, 25
sXo0, sXo1 = 26, 27
sDq, sDf, sM0 = 28, 29, 30
sT0, sT1, sT2, sT3 = 31, 32, 33, 34
sRTg = 35
sSt0, sSt1 = 36, 37
sTq = 38
sP = 40

vL = 0
vXoff, vXw, vRw = 1, 2, 3
vXr = 4
vDq, vDf = 8, 9
vTrB = 10
vTf = 12
vTr = 14
XF = 16
ACC = 128
FB = 160
T = 184
vR, vNrl, vRR2 = 208, 209, 210
vL16, vVst, vVw, vVr = 211, 212, 213, 214
vC0, vC1, vOnes = 215, 216, 217
vS = 218


def prologue(a, name):
    a(f"""
    s_cmp_ge_u32 s2, 256
    s_cbranch_scc1 L_{name}_end
    s_and_b32 s3, s2, 7
    s_lshr_b32 s{sT0}, s2, 3
    s_cmp_ge_u32 s{sT0}, 28
    s_cbranch_scc1 L_{name}_end
    s_load_dwordx4 s[{sP}:{sP+3}], s[0:1], 0
    s_load_dwordx4 s[{sP+4}:{sP+7}], s[0:1], 32
    s_load_dwordx2 s[{sP+8}:{sP+9}], s[0:1], 72
    s_lshr_b32 s{sT1}, s3, 1
    s_lshl_b32 s{sT1}, s{sT1}, 2
    s_and_b32 s{sT2}, s{sT0}, 3
    s_add_u32 s{sRB}, s{sT1}, s{sT2}
    s_and_b32 s{sT1}, s3, 1
    s_mul_i32 s{sT1}, s{sT1}, 7
    s_lshr_b32 s{sT2}, s{sT0}, 2
    s_add_u32 s{sG}, s{sT1}, s{sT2}
    v_lshrrev_b32 v1, 6, v0
    v_and_b32 v{vL}, 63, v0
    s_nop 0
    v_readfirstlane_b32 s{sW}, v1
    s_nop 3
    s_and_b32 s{sRT}, s{sW}, 3
    s_lshr_b32 s{sCH}, s{sW}, 2
    s_and_b32 s{sQ4}, s{sW}, 3
    s_lshl_b32 s{sRTg}, s{sRB}, 2
    s_add_u32 s{sRTg}, s{sRTg}, s{sRT}
    """)
    a(f"""
    s_lshl_b32 s{sT1}, s{sRB}, 7
    s_lshl_b32 s{sT2}, s{sW}, 4
    s_add_u32 s{sT1}, s{sT1}, s{sT2}
    s_mul_i32 s{sXo0}, s{sT1}, 896
    s_add_u32 s{sXo1}, s{sXo0}, {8*896}
    v_lshrrev_b32 v20, 3, v{vL}
    v_and_b32 v21, 7, v{vL}
    v_mul_u32_u24 v22, 896, v20
    v_lshlrev_b32 v23, 4, v21
    v_add_u32 v{vXoff}, v22, v23
    s_waitcnt lgkmcnt(0)
    """)
    srd(a, sX, sP, S * D * 2)
    srd(a, sWQ, sP + 2, D * 3 * D * 2)
    a(f"""
    s_cmp_ge_u32 s{sQ4}, 2
    s_cselect_b32 s{sWF}, s{sP+6}, s{sP+4}
    s_cselect_b32 s{sT1}, s{sP+7}, s{sP+5}
    s_and_b32 s{sWF+1}, s{sT1}, 0xffff
    s_mov_b32 s{sWF+2}, {D*F*2}
    s_mov_b32 s{sWF+3}, {hex(SRD3)}
    """)
    srd(a, sWS, sP + 8, WS_SIZE)


def x_loads(a):
    for gq in range(2):
        for kb in range(7):
            r = XF + 28 * gq + 4 * kb
            a.vm(f"buffer_load_dwordx4 v[{r}:{r+3}], v{vXoff}, s[{sX}:{sX+3}], s{sXo0+gq} offen offset:{kb*128}", ("x", gq, kb))


def addr_setup(a):
    t0, t1, t2, t3, t4, t5 = T, T + 1, T + 2, T + 3, T + 4, T + 5
    a(f"""
    v_lshrrev_b32 v{t0}, 3, v{vL}
    v_and_b32 v{t1}, 7, v{vL}
    s_and_b32 s{sT1}, s{sW}, 1
    v_xor_b32 v{t1}, v{t1}, v{t0}
    v_xor_b32 v{t1}, s{sT1}, v{t1}
    v_lshlrev_b32 v{t1}, 4, v{t1}
    v_lshlrev_b32 v{t2}, 7, v{t0}
    v_add_u32 v{t1}, v{t1}, v{t2}
    s_lshr_b32 s{sT2}, s{sW}, 1
    s_mul_i32 s{sT2}, s{sT2}, 28672
    s_mul_i32 s{sT3}, s{sT1}, 14336
    s_add_u32 s{sT2}, s{sT2}, s{sT3}
    v_add_u32 v{vXw}, s{sT2}, v{t1}
    s_lshl_b32 s{sT2}, s{sW}, 6
    s_add_u32 s{sT2}, s{sT2}, {MISC}
    v_lshlrev_b32 v{t2}, 2, v{t0}
    v_add_u32 v{vRw}, s{sT2}, v{t2}
    """)
    a(f"""
    v_and_b32 v{t0}, 31, v{vL}
    v_lshrrev_b32 v{t1}, 5, v{vL}
    v_and_b32 v{t2}, 7, v{t0}
    v_lshrrev_b32 v{t3}, 4, v{t0}
    v_xor_b32 v{t3}, v{t3}, v{t2}
    v_lshrrev_b32 v{t4}, 3, v{t0}
    v_mul_u32_u24 v{t4}, 7168, v{t4}
    v_lshlrev_b32 v{t2}, 7, v{t2}
    v_add_u32 v{t4}, v{t4}, v{t2}
    s_mul_i32 s{sT2}, s{sRT}, 28672
    v_add_u32 v{t4}, s{sT2}, v{t4}
    """)
    for sp in range(4):
        a(f"""
        v_add_u32 v{t5}, {2*sp}, v{t1}
        v_xor_b32 v{t5}, v{t5}, v{t3}
        v_lshlrev_b32 v{t5}, 4, v{t5}
        v_add_u32 v{vXr+sp}, v{t4}, v{t5}
        """)
    a(f"""
    v_lshrrev_b32 v{t0}, 4, v{vL}
    v_and_b32 v{t1}, 15, v{vL}
    v_lshlrev_b32 v{t2}, 2, v{t0}
    v_xor_b32 v{t1}, v{t1}, v{t2}
    v_lshlrev_b32 v{t1}, 4, v{t1}
    s_lshl_b32 s{sT1}, s{sQ4}, 2
    v_add_u32 v{t0}, s{sT1}, v{t0}
    v_mul_u32_u24 v{t0}, 2688, v{t0}
    v_add_u32 v{vDq}, v{t0}, v{t1}
    v_lshrrev_b32 v{t0}, 3, v{vL}
    v_and_b32 v{t1}, 7, v{vL}
    v_bfe_u32 v{t2}, v{vL}, 4, 1
    s_lshr_b32 s{sT1}, s{sQ4}, 1
    s_lshl_b32 s{sT1}, s{sT1}, 1
    v_or_b32 v{t2}, s{sT1}, v{t2}
    v_lshlrev_b32 v{t2}, 1, v{t2}
    v_xor_b32 v{t1}, v{t1}, v{t2}
    v_lshlrev_b32 v{t1}, 4, v{t1}
    s_and_b32 s{sT1}, s{sQ4}, 1
    s_lshl_b32 s{sT1}, s{sT1}, 3
    v_add_u32 v{t0}, s{sT1}, v{t0}
    v_mul_u32_u24 v{t0}, 3584, v{t0}
    v_add_u32 v{vDf}, v{t0}, v{t1}
    """)
    a(f"""
    s_mul_i32 s{sDq}, s{sG}, 192
    s_and_b32 s{sT1}, s{sG}, 1
    s_lshl_b32 s{sT2}, s{sT1}, 6
    s_sub_u32 s{sDq}, s{sDq}, s{sT2}
    s_mul_i32 s{sT2}, s{sCH}, {16*2688}
    s_add_u32 s{sDq}, s{sDq}, s{sT2}
    s_lshl_b32 s{sDf}, s{sG}, 8
    s_mul_i32 s{sT2}, s{sCH}, {16*3584}
    s_add_u32 s{sDf}, s{sDf}, s{sT2}
    s_lshl_b32 s{sM0}, s{sCH}, 12
    s_lshl_b32 s{sT2}, s{sQ4}, 10
    s_add_u32 s{sM0}, s{sM0}, s{sT2}
    """)
    a(f"""
    v_bfe_u32 v{t0}, v{vL}, 2, 2
    v_lshrrev_b32 v{t1}, 5, v{vL}
    v_bfe_u32 v{t2}, v{vL}, 4, 1
    v_bfe_u32 v{t3}, v{vL}, 1, 1
    v_and_b32 v{t4}, 1, v{vL}
    """)
    a(f"""
    v_lshl_add_u32 v{t5}, v{t1}, 3, v{t0}
    v_lshlrev_b32 v{t5}, 8, v{t5}
    v_lshl_add_u32 v{T+6}, v{t2}, 1, v{t3}
    v_lshl_add_u32 v{t5}, v{T+6}, 4, v{t5}
    v_lshl_add_u32 v{t5}, v{t4}, 3, v{t5}
    s_and_b32 s{sT1}, s{sG}, 1
    s_lshl_b32 s{sT2}, s{sCH}, 1
    s_add_u32 s{sT1}, s{sT1}, s{sT2}
    """)
    for tt in range(2):
        a(f"""
        s_add_u32 s{sT2}, s{sT1}, {tt}
        v_xor_b32 v{T+6}, s{sT2}, v{t0}
        v_lshl_add_u32 v{vTrB+tt}, v{T+6}, 6, v{t5}
        """)
    a(f"""
    v_lshl_add_u32 v{t5}, v{t1}, 3, v{t0}
    v_lshlrev_b32 v{t5}, 7, v{t5}
    v_lshl_add_u32 v{t5}, v{t2}, 11, v{t5}
    v_lshl_add_u32 v{t5}, v{t3}, 4, v{t5}
    v_lshl_add_u32 v{t5}, v{t4}, 3, v{t5}
    v_lshrrev_b32 v{T+6}, 1, v{t0}
    v_lshl_or_b32 v{T+6}, v{t2}, 1, v{T+6}
    s_lshl_b32 s{sT1}, s{sCH}, 1
    """)
    for tt in range(2):
        a(f"""
        s_add_u32 s{sT2}, s{sT1}, {tt}
        v_xor_b32 v{T+7}, s{sT2}, v{T+6}
        v_lshl_add_u32 v{vTf+tt}, v{T+7}, 5, v{t5}
        """)
    a(f"""
    v_lshlrev_b32 v{vL16}, 4, v{vL}
    v_and_b32 v{T+6}, 31, v{vL}
    v_mul_u32_u24 v{T+7}, 7168, v{t1}
    v_lshl_add_u32 v{vVst}, v{T+6}, 4, v{T+7}
    s_lshl_b32 s{sT1}, s{sW}, 11
    s_add_u32 s{sT1}, s{sT1}, {MISC}
    v_bfe_u32 v{T+7}, v{vL}, 1, 2
    v_lshlrev_b32 v{vVw}, 6, v{T+6}
    v_lshl_add_u32 v{vVw}, v{t1}, 3, v{vVw}
    v_add_u32 v{vVw}, s{sT1}, v{vVw}
    v_lshlrev_b32 v{T+8}, 4, v{T+7}
    v_mov_b32 v{vC0}, 0x00003f80
    v_mov_b32 v{vC1}, 0x3f800000
    v_mov_b32 v{vOnes}, 0x3f803f80
    """)
    a(f"v_mov_b32 v{vS+7}, v{T+8}")
    a(f"""
    v_lshl_add_u32 v{t5}, v{t1}, 2, v{t0}
    v_lshlrev_b32 v{t5}, 6, v{t5}
    v_lshl_add_u32 v{T+6}, v{t2}, 1, v{t3}
    v_lshrrev_b32 v{T+7}, 1, v{t0}
    v_lshl_or_b32 v{T+7}, v{t1}, 1, v{T+7}
    v_xor_b32 v{T+6}, v{T+6}, v{T+7}
    v_lshl_add_u32 v{t5}, v{T+6}, 4, v{t5}
    v_lshl_add_u32 v{t5}, v{t4}, 3, v{t5}
    v_add_u32 v{vVr}, s{sT1}, v{t5}
    """)


def slot_base(stage):
    return ((7 + stage) % NSLOT) * RING_SLOT


def dma_stage(a, stage):
    p, st = divmod(stage, 7)
    for j in range(2):
        ks = 4 * st + 2 * j
        if p == 0:
            a(f"s_add_u32 m0, s{sM0}, {slot_base(stage) + 2*j*4096}")
            a(f"s_add_u32 s{sT0}, s{sDq}, {ks*16*2688}")
            a.vm(f"buffer_load_dwordx4 v{vDq}, s[{sWQ}:{sWQ+3}], s{sT0} offen lds", ("st", stage))
        else:
            a(f"s_add_u32 m0, s{sM0}, {slot_base(stage) + 2*j*4096}")
            a(f"s_add_u32 s{sT0}, s{sDf}, {ks*16*3584 + (p-1)*128}")
            a.vm(f"buffer_load_dwordx4 v{vDf}, s[{sWF}:{sWF+3}], s{sT0} offen lds", ("st", stage))


def layernorm(a):
    inv = f32(1.0 / D)
    for gq in range(2):
        X = XF + 28 * gq
        s1a, s1b, s2a, s2b, mean, var = vS, vS + 1, vS + 2, vS + 3, vS + 4, vS + 5
        for kb in range(7):
            a.vm_wait(("x", gq, kb))
            for r in range(4):
                x = X + 4 * kb + r
                first = kb == 0 and r < 2
                d1 = s1a if r % 2 == 0 else s1b
                d2 = s2a if r % 2 == 0 else s2b
                a(f"v_dot2_f32_bf16 v{d1}, v{x}, v{vOnes}, {'0' if first else 'v%d' % d1}")
                a(f"v_dot2_f32_bf16 v{d2}, v{x}, v{x}, {'0' if first else 'v%d' % d2}")
        a(f"""
        s_nop 2
        v_add_f32 v{s1a}, v{s1a}, v{s1b}
        v_add_f32 v{s2a}, v{s2a}, v{s2b}
        s_nop 0
        v_add_f32_dpp v{s1a}, v{s1a}, v{s1a} quad_perm:[1,0,3,2] row_mask:0xf bank_mask:0xf
        v_add_f32_dpp v{s2a}, v{s2a}, v{s2a} quad_perm:[1,0,3,2] row_mask:0xf bank_mask:0xf
        s_nop 0
        v_add_f32_dpp v{s1a}, v{s1a}, v{s1a} quad_perm:[2,3,0,1] row_mask:0xf bank_mask:0xf
        v_add_f32_dpp v{s2a}, v{s2a}, v{s2a} quad_perm:[2,3,0,1] row_mask:0xf bank_mask:0xf
        s_nop 0
        v_add_f32_dpp v{s1a}, v{s1a}, v{s1a} row_half_mirror row_mask:0xf bank_mask:0xf
        v_add_f32_dpp v{s2a}, v{s2a}, v{s2a} row_half_mirror row_mask:0xf bank_mask:0xf
        v_mul_f32 v{mean}, {inv}, v{s1a}
        v_mul_f32 v{var}, {inv}, v{s2a}
        v_fma_f32 v{var}, -v{mean}, v{mean}, v{var}
        v_max_f32 v{var}, 0, v{var}
        v_add_f32 v{var}, {f32(1e-5)}, v{var}
        v_rsq_f32 v{var}, v{var}
        v_sub_f32 v{mean}, 0, v{mean}
        ds_write_b32 v{vRw}, v{var} offset:{32*gq}
        """)
        for kb in range(7):
            for r in range(4):
                x = X + 4 * kb + r
                a(f"v_dot2_f32_bf16 v{T+2*r}, v{x}, v{vC0}, v{mean}")
                a(f"v_dot2_f32_bf16 v{T+2*r+1}, v{x}, v{vC1}, v{mean}")
            for r in range(4):
                x = X + 4 * kb + r
                a(f"v_cvt_pk_bf16_f32 v{x}, v{T+2*r}, v{T+2*r+1}")
            x = X + 4 * kb
            a(f"ds_write_b128 v{vXw}, v[{x}:{x+3}] offset:{gq*7168 + kb*1024}")


def read_frags(a):
    for s in range(28):
        kb, sp = divmod(s, 4)
        r = XF + 4 * s
        a(f"ds_read_b128 v[{r}:{r+3}], v{vXr+sp} offset:{kb*1024}")
    a(f"""
    v_and_b32 v{T}, 31, v{vL}
    s_lshl_b32 s{sT1}, s{sRT}, 7
    s_add_u32 s{sT1}, s{sT1}, {MISC}
    v_lshlrev_b32 v{T}, 2, v{T}
    v_add_u32 v{T}, s{sT1}, v{T}
    ds_read_b32 v{vR}, v{T}
    s_waitcnt lgkmcnt(0)
    v_mul_f32 v{vNrl}, {f32(-LOG2E)}, v{vR}
    v_mul_f32 v{vRR2}, v{vR}, v{vR}
    """)


def tr_reads(a, n, ntiles):
    stage, kin = divmod(n, 4)
    p = stage // 7
    if kin == 0:
        base = vTrB if p == 0 else vTf
        for tt in range(ntiles):
            a(f"v_add_u32 v{vTr+tt}, {slot_base(stage)}, v{base+tt}")
    second = 1024 if p == 0 else 512
    for tt in range(ntiles):
        r = FB + 8 * (n % 3) + 4 * tt
        a(f"ds_read_b64_tr_b16 v[{r}:{r+1}], v{vTr+tt} offset:{kin*4096}")
        a(f"ds_read_b64_tr_b16 v[{r+2}:{r+3}], v{vTr+tt} offset:{kin*4096+second}")


def qk_epilogue(a, acc, scale, soff, tag):
    for r in range(16):
        a(f"v_mul_f32 v{acc+r}, v{scale}, v{acc+r}")
    for r in range(8):
        a(f"v_cvt_pk_bf16_f32 v{T+r}, v{acc+2*r}, v{acc+2*r+1}")
    a("s_nop 0")
    for ii in range(2):
        b = T + 4 * ii
        a(f"v_permlane32_swap_b32 v{b}, v{b+2}")
        a(f"v_permlane32_swap_b32 v{b+1}, v{b+3}")
    for ii in range(2):
        b = T + 4 * ii
        a.vm(f"buffer_store_dwordx4 v[{b}:{b+3}], v{vL16}, s[{sWS}:{sWS+3}], s{soff} offen offset:{ii*1024}", tag)


def v_epilogue(a, acc, soff0, soff1, tag):
    for r in range(16):
        a(f"v_mul_f32 v{acc+r}, v{vR}, v{acc+r}")
    for r in range(8):
        a(f"v_cvt_pk_bf16_f32 v{T+r}, v{acc+2*r}, v{acc+2*r+1}")
    for i in range(4):
        a(f"v_xor_b32 v{T+8}, {16*i}, v{vS+7}")
        a(f"v_add_u32 v{T+8}, v{vVw}, v{T+8}")
        a(f"ds_write_b64 v{T+8}, v[{T+2*i}:{T+2*i+1}]")
    a("s_waitcnt lgkmcnt(0)")
    for sq in range(2):
        for h in range(2):
            r = T + 12 + 4 * sq + 2 * h
            a(f"ds_read_b64_tr_b16 v[{r}:{r+1}], v{vVr} offset:{sq*1024 + h*512}")
    a("s_waitcnt lgkmcnt(0)")
    a.vm(f"buffer_store_dwordx4 v[{T+12}:{T+15}], v{vVst}, s[{sWS}:{sWS+3}], s{soff0} offen", tag)
    a.vm(f"buffer_store_dwordx4 v[{T+16}:{T+19}], v{vVst}, s[{sWS}:{sWS+3}], s{soff1} offen", tag)


def qkv_epilogue(a, name, ntiles):
    for tt in range(ntiles):
        acc = ACC + 16 * tt
        lab = f"L_{name}_e{ntiles}_{tt}"
        a(f"""
        s_mul_i32 s{sTq}, s{sG}, 3
        s_lshl_b32 s{sT1}, s{sCH}, 1
        s_add_u32 s{sTq}, s{sTq}, s{sT1}
        s_add_u32 s{sTq}, s{sTq}, {tt}
        s_cmp_ge_u32 s{sTq}, 28
        s_cbranch_scc1 {lab}_v
        s_cmp_ge_u32 s{sTq}, 14
        s_cselect_b32 s{sT1}, 14, 0
        s_cselect_b32 s{sT2}, {hex(WS_K-WS_Q)}, 0
        s_add_u32 s{sT2}, s{sT2}, {hex(WS_Q)}
        s_cmp_ge_u32 s{sTq}, 14
        s_cselect_b32 s{sT3}, 1.0, {f32(QSCALE)}
        s_sub_u32 s{sT1}, s{sTq}, s{sT1}
        s_lshl_b32 s{sT1}, s{sT1}, 11
        s_add_u32 s{sT2}, s{sT2}, s{sT1}
        s_mul_i32 s{sT1}, s{sRTg}, 28672
        s_add_u32 s{sSt0}, s{sT2}, s{sT1}
        v_mul_f32 v{T+20}, s{sT3}, v{vR}
        """)
        save = list(a.vm_ops)
        qk_epilogue(a, acc, T + 20, sSt0, ("qkv", tt))
        a(f"s_branch {lab}_done")
        a.label(f"{lab}_v")
        a.vm_ops = save
        a(f"""
        s_sub_u32 s{sT1}, s{sTq}, 28
        s_lshl_b32 s{sT1}, s{sT1}, 9
        s_mul_i32 s{sT2}, s{sRTg}, 28672
        s_add_u32 s{sT1}, s{sT1}, s{sT2}
        s_add_u32 s{sSt0}, s{sT1}, {hex(WS_V)}
        s_add_u32 s{sSt1}, s{sSt0}, 14336
        """)
        v_epilogue(a, acc, sSt0, sSt1, ("qkv", tt))
        a.label(f"{lab}_done")


def ffn_epilogue(a, p):
    for tt in range(2):
        A = ACC + 16 * tt
        E = T + 8
        for r in range(8):
            a(f"v_mul_f32 v{T+r}, v{vNrl}, v{A+r}")
        for r in range(8):
            a(f"v_exp_f32 v{T+r}, v{T+r}")
        for r in range(8):
            a(f"v_mul_f32 v{E+r}, v{A+r}, v{A+8+r}")
        for r in range(8):
            a(f"v_add_f32 v{T+r}, 1.0, v{T+r}")
        for r in range(8):
            a(f"v_rcp_f32 v{T+r}, v{T+r}")
        for r in range(8):
            a(f"v_mul_f32 v{E+r}, v{vRR2}, v{E+r}")
        for r in range(8):
            a(f"v_mul_f32 v{E+r}, v{E+r}, v{T+r}")
        for r in range(4):
            a(f"v_cvt_pk_bf16_f32 v{T+16+r}, v{E+2*r}, v{E+2*r+1}")
        a(f"""
        s_mul_i32 s{sT1}, s{sRTg}, 112
        s_lshl_b32 s{sT2}, s{sG}, 3
        s_add_u32 s{sT1}, s{sT1}, s{sT2}
        s_lshl_b32 s{sT2}, s{sCH}, 1
        s_add_u32 s{sT1}, s{sT1}, s{sT2}
        s_add_u32 s{sT1}, s{sT1}, {4*p + tt}
        s_lshl_b32 s{sSt0}, s{sT1}, 10
        """)
        a.vm(f"buffer_store_dwordx4 v[{T+16}:{T+19}], v{vL16}, s[{sWS}:{sWS+3}], s{sSt0} offen", ("h", p, tt))
        a("s_nop 1")


def ksteps(a, n0, n1, ntiles_of):
    for n in range(n0, n1):
        stage, kin = divmod(n, 4)
        p, s = n // 28, n % 28
        nt = ntiles_of(n)
        if kin == 0 and n > 0:
            if stage + 1 <= 20:
                a.vm_wait(("st", stage + 1))
            a("s_barrier")
            if stage >= 1 and stage + 8 <= 20:
                dma_stage(a, stage + 8)
        if n + 2 < 84:
            tr_reads(a, n + 2, ntiles_of(n + 2))
        ahead = sum(2 * ntiles_of(m) for m in (n + 1, n + 2) if m < 84)
        a(f"s_waitcnt lgkmcnt({ahead})")
        for tt in range(nt):
            f = FB + 8 * (n % 3) + 4 * tt
            acc = ACC + 16 * tt
            c = "0" if s == 0 else f"v[{acc}:{acc+15}]"
            x = XF + 4 * s
            a(f"v_mfma_f32_32x32x16_bf16 v[{acc}:{acc+15}], v[{f}:{f+3}], v[{x}:{x+3}], {c}")


def gen_k1(name):
    a = Asm()
    prologue(a, name)
    x_loads(a)
    addr_setup(a)
    dma_stage(a, 0)
    dma_stage(a, 1)
    layernorm(a)
    a("s_waitcnt lgkmcnt(0)")
    a("s_barrier")
    read_frags(a)
    a("s_barrier")
    for st in range(2, 9):
        dma_stage(a, st)
    a(f"s_cmp_eq_u32 s{sCH}, 0")
    a(f"s_cbranch_scc0 L_{name}_q1")
    saved = list(a.vm_ops)
    ends = []
    for nt in (2, 1):
        if nt == 1:
            a.label(f"L_{name}_q1")
            a.vm_ops = list(saved)
        nto = lambda n, nt=nt: nt if n < 28 else 2
        a.vm_wait(("st", 1))
        a("s_barrier")
        tr_reads(a, 0, nto(0))
        tr_reads(a, 1, nto(1))
        ksteps(a, 0, 28, nto)
        a("s_nop 7")
        a("s_nop 3")
        qkv_epilogue(a, name, nt)
        ends.append(list(a.vm_ops))
        if nt == 2:
            a(f"s_branch L_{name}_ffn")
    a.label(f"L_{name}_ffn")
    a.vm_ops = ends[1]
    nto = lambda n: 2
    for p in range(2):
        ksteps(a, 28 * (p + 1), 28 * (p + 2), nto)
        a("s_nop 7")
        a("s_nop 3")
        ffn_epilogue(a, p)
    a.label(f"L_{name}_end")
    a("s_endpgm")
    return a
```

```python
from asmlib import Asm
from common import *

LDS_K2 = 65536

sWS = 4
sW, sH, sRB, sU0 = 8, 9, 10, 11
sK, sV, sT0, sT1, sT2, sCnt = 12, 13, 14, 15, 16, 17
sMask = 18
sP = 20

vL, vL16, vVo0, vVo1, vT = 0, 1, 2, 3, 4
QF = 8
KB = 40
VB = 56
OA = 72
SB = 136
PB = 168
R = 184
TT = 200


def load_k(a, buf, delta):
    a(f"s_add_u32 s{sT0}, s{sK}, {delta*28672}")
    for sp in range(2):
        r = KB + 8 * buf + 4 * sp
        a(f"buffer_load_dwordx4 v[{r}:{r+3}], v{vL16}, s[{sWS}:{sWS+3}], s{sT0} offen offset:{sp*1024}")


def load_v(a, buf, delta):
    a(f"s_add_u32 s{sT0}, s{sV}, {delta*28672}")
    a(f"s_mov_b64 exec, s[{sMask}:{sMask+1}]")
    for sq in range(2):
        r = VB + 8 * buf + 4 * sq
        a(f"buffer_load_dwordx4 v[{r}:{r+3}], v{vVo0+sq}, s[{sWS}:{sWS+3}], s{sT0} offen")
    a("s_mov_b64 exec, -1")


def mfma_s(a, n, half):
    S = SB + 16 * (n & 1)
    k = KB + 8 * ((n >> 2) & 1) + 4 * half
    q = QF + 8 * (n & 3) + 4 * half
    c = "0" if half == 0 else f"v[{S}:{S+15}]"
    a(f"v_mfma_f32_32x32x16_bf16 v[{S}:{S+15}], v[{k}:{k+3}], v[{q}:{q+3}], {c}")


def mfma_pv(a, n, half):
    O = OA + 16 * (n & 3)
    v = VB + 8 * ((n >> 2) & 1) + 4 * half
    p = PB + 8 * (n & 1) + 4 * half
    a(f"v_mfma_f32_32x32x16_bf16 v[{O}:{O+15}], v[{v}:{v+3}], v[{p}:{p+3}], v[{O}:{O+15}]")


def expgrp(a, n, g):
    S = SB + 16 * (n & 1) + 4 * g
    P = PB + 8 * (n & 1) + 2 * g
    for r in range(4):
        a(f"v_exp_f32 v{S+r}, v{S+r}")
    a(f"v_cvt_pk_bf16_f32 v{P}, v{S}, v{S+1}")
    a(f"v_cvt_pk_bf16_f32 v{P+1}, v{S+2}, v{S+3}")


def gen_k2(name):
    a = Asm()
    a(f"""
    s_cmp_ge_u32 s2, 256
    s_cbranch_scc1 L_{name}_end
    s_load_dwordx2 s[{sP}:{sP+1}], s[0:1], 72
    s_and_b32 s3, s2, 7
    s_lshr_b32 s{sT0}, s2, 3
    s_and_b32 s{sT1}, s{sT0}, 1
    s_lshl_b32 s{sH}, s3, 1
    s_add_u32 s{sH}, s{sH}, s{sT1}
    s_lshr_b32 s{sRB}, s{sT0}, 1
    s_mul_i32 s{sU0}, s3, 7
    s_mul_i32 s{sT2}, s{sT1}, 3
    s_add_u32 s{sU0}, s{sU0}, s{sT2}
    v_lshrrev_b32 v1, 6, v0
    v_and_b32 v{vL}, 63, v0
    s_nop 0
    v_readfirstlane_b32 s{sW}, v1
    v_lshlrev_b32 v{vL16}, 4, v{vL}
    s_mov_b32 s{sMask}, 0x0fffffff
    s_mov_b32 s{sMask+1}, 0x0fffffff
    s_waitcnt lgkmcnt(0)
    """)
    srd(a, sWS, sP, WS_SIZE)
    a(f"""
    s_lshl_b32 s{sT0}, s{sRB}, 2
    s_mul_i32 s{sT0}, s{sT0}, 28672
    s_lshl_b32 s{sT1}, s{sU0}, 9
    s_add_u32 s{sT0}, s{sT0}, s{sT1}
    s_add_u32 s{sT0}, s{sT0}, {hex(WS_Q)}
    """)
    for q in range(4):
        for sp in range(2):
            r = QF + 8 * q + 4 * sp
            a(f"buffer_load_dwordx4 v[{r}:{r+3}], v{vL16}, s[{sWS}:{sWS+3}], s{sT0} offen offset:{sp*1024}")
        if q < 3:
            a(f"s_add_u32 s{sT0}, s{sT0}, 28672")
    a(f"""
    s_mul_i32 s{sT0}, s{sW}, {16*28672}
    s_lshl_b32 s{sT1}, s{sU0}, 9
    s_add_u32 s{sK}, s{sT0}, s{sT1}
    s_add_u32 s{sK}, s{sK}, {hex(WS_K)}
    s_add_u32 s{sV}, s{sT0}, {hex(WS_V)}
    v_and_b32 v{vT}, 31, v{vL}
    v_lshrrev_b32 v{vT+1}, 5, v{vL}
    s_mul_i32 s{sT1}, s{sH}, 28
    v_add_u32 v{vT+2}, s{sT1}, v{vT}
    v_lshlrev_b32 v{vT+2}, 4, v{vT+2}
    v_mul_u32_u24 v{vT+3}, 7168, v{vT+1}
    v_add_u32 v{vVo0}, v{vT+2}, v{vT+3}
    v_add_u32 v{vVo1}, 14336, v{vVo0}
    """)
    a(f"""
    v_cmp_eq_u32 vcc, 28, v{vT}
    v_mov_b32 v{TT}, 0x3f803f80
    s_nop 0
    v_cndmask_b32 v{TT}, 0, v{TT}, vcc
    """)
    for r in range(16):
        a(f"v_mov_b32 v{VB+r}, v{TT}")
    for r in range(8):
        a(f"v_mov_b32 v{PB+8+r}, 0")
    load_k(a, 0, 0)
    load_v(a, 0, 0)
    load_k(a, 1, 1)
    for r in range(64):
        a(f"v_mov_b32 v{OA+r}, 0")
    a("s_waitcnt vmcnt(6)")
    a(f"""
    s_and_b32 s{sT0}, s{sH}, 1
    s_cmp_eq_u32 s{sT0}, 0
    s_cbranch_scc0 L_{name}_odd
    s_mov_b32 exec_lo, 0
    """)
    for q in range(4):
        a(f"v_mov_b32 v{QF+8*q+6}, 0")
        a(f"v_mov_b32 v{QF+8*q+7}, 0")
    a(f"s_branch L_{name}_qz")
    a.label(f"L_{name}_odd")
    a("s_mov_b32 exec_hi, 0")
    for q in range(4):
        a(f"v_mov_b32 v{QF+8*q}, 0")
        a(f"v_mov_b32 v{QF+8*q+1}, 0")
    a.label(f"L_{name}_qz")
    a("s_mov_b64 exec, -1")
    a("s_waitcnt vmcnt(4)")
    a("s_nop 1")
    mfma_s(a, 0, 0)
    mfma_s(a, 0, 1)
    a(f"s_mov_b32 s{sCnt}, 8")
    a("s_nop 7")
    a("s_nop 3")
    a(".p2align 5")
    a.label(f"L_{name}_loop")
    for n in range(8):
        if n == 1:
            load_v(a, 1, 1)
        if n == 3:
            load_k(a, 0, 2)
        if n == 5:
            load_v(a, 0, 2)
        if n == 7:
            load_k(a, 1, 3)
        if n in (3, 7):
            a("s_waitcnt vmcnt(4)")
        mfma_s(a, n + 1, 0)
        expgrp(a, n, 0)
        mfma_s(a, n + 1, 1)
        expgrp(a, n, 1)
        if n in (1, 5):
            a("s_waitcnt vmcnt(4)")
        mfma_pv(a, n - 1, 0)
        expgrp(a, n, 2)
        mfma_pv(a, n - 1, 1)
        expgrp(a, n, 3)
    a(f"""
    s_add_u32 s{sK}, s{sK}, {2*28672}
    s_add_u32 s{sV}, s{sV}, {2*28672}
    s_sub_u32 s{sCnt}, s{sCnt}, 1
    s_cmp_lg_u32 s{sCnt}, 0
    s_cbranch_scc1 L_{name}_loop
    """)
    a("s_nop 1")
    mfma_pv(a, 7, 0)
    mfma_pv(a, 7, 1)
    a(f"""
    s_lshl_b32 s{sT0}, s{sW}, 14
    v_add_u32 v{vT}, s{sT0}, v{vL16}
    s_lshl_b32 s{sT0}, s{sW}, 12
    v_add_u32 v{vT+1}, s{sT0}, v{vL16}
    s_waitcnt vmcnt(0)
    s_nop 7
    s_nop 3
    """)
    for q in range(4):
        for rq in range(4):
            r = OA + 16 * q + 4 * rq
            a(f"ds_write_b128 v{vT}, v[{r}:{r+3}] offset:{q*4096 + rq*1024}")
    a("s_waitcnt lgkmcnt(0)")
    a("s_barrier")
    for sw in range(4):
        for rq in range(4):
            r = OA + 16 * sw + 4 * rq
            a(f"ds_read_b128 v[{r}:{r+3}], v{vT+1} offset:{sw*16384 + rq*1024}")
    a("s_waitcnt lgkmcnt(8)")
    for r in range(16):
        a(f"v_add_f32 v{R+r}, v{OA+r}, v{OA+16+r}")
    a("s_waitcnt lgkmcnt(4)")
    for r in range(16):
        a(f"v_add_f32 v{R+r}, v{R+r}, v{OA+32+r}")
    a("s_waitcnt lgkmcnt(0)")
    for r in range(16):
        a(f"v_add_f32 v{R+r}, v{R+r}, v{OA+48+r}")
    a(f"""
    v_mov_b32 v{TT}, v{R+12}
    v_mov_b32 v{TT+1}, v{R+12}
    s_nop 1
    v_permlane32_swap_b32 v{TT}, v{TT+1}
    s_nop 1
    v_rcp_f32 v{TT+1}, v{TT+1}
    s_nop 0
    """)
    for r in range(16):
        a(f"v_mul_f32 v{R+r}, v{TT+1}, v{R+r}")
    for r in range(8):
        a(f"v_cvt_pk_bf16_f32 v{TT+4+r}, v{R+2*r}, v{R+2*r+1}")
    a(f"""
    s_mov_b32 exec_lo, 0
    v_mov_b32 v{TT+4+6}, 0
    v_mov_b32 v{TT+4+7}, 0
    s_mov_b64 exec, -1
    s_lshl_b32 s{sT0}, s{sRB}, 2
    s_add_u32 s{sT0}, s{sT0}, s{sW}
    s_lshl_b32 s{sT0}, s{sT0}, 4
    s_add_u32 s{sT0}, s{sT0}, s{sH}
    s_lshl_b32 s{sT0}, s{sT0}, 11
    s_add_u32 s{sT0}, s{sT0}, {hex(WS_O)}
    buffer_store_dwordx4 v[{TT+4}:{TT+7}], v{vL16}, s[{sWS}:{sWS+3}], s{sT0} offen
    buffer_store_dwordx4 v[{TT+8}:{TT+11}], v{vL16}, s[{sWS}:{sWS+3}], s{sT0} offen offset:1024
    """)
    a.label(f"L_{name}_end")
    a("s_endpgm")
    return a
```

```python
from asmlib import Asm
from common import *

LDS_K3 = 163840
WREG = 40960
WO_IMG = 0
W2_RING = 15360
NSL = 12
PD = 6

sWS, sW2, sWO, sX, sOUT = 4, 8, 12, 16, 20
sW, sRP, sCG = 24, 25, 26
sT0, sT1, sT2 = 27, 28, 29
sH0, sH1 = 30, 31
sD, sM0 = 32, 33
sO0, sO1 = 34, 35
sP = 40

vL, vL16, vD, vTr, vTo, vT = 0, 1, 2, 3, 5, 7
vXo = 12
HB = 16
FB = 72
ACC = 88
XR = 152
TT = 160


def nk_total():
    return 36


def issue_loads(a, j):
    hb = HB + 8 * (j % 7)
    if j < 28:
        for rt in range(2):
            a(f"s_add_u32 s{sT0}, s{sH0+rt}, {j*1024}")
            a.vm(f"buffer_load_dwordx4 v[{hb+4*rt}:{hb+4*rt+3}], v{vL16}, s[{sWS}:{sWS+3}], s{sT0} offen", ("k", j))
        for q in range(2):
            a(f"s_add_u32 m0, s{sM0}, {W2_RING + (j % NSL)*2048 + q*1024}")
            a(f"s_add_u32 s{sT0}, s{sD}, {(16*j + 8*q)*896}")
            a.vm(f"buffer_load_dwordx4 v{vD}, s[{sW2}:{sW2+3}], s{sT0} offen lds", ("k", j))
    else:
        jj = j - 28
        for rt in range(2):
            a(f"s_add_u32 s{sT0}, s{sO0+rt}, {jj*1024}")
            a.vm(f"buffer_load_dwordx4 v[{hb+4*rt}:{hb+4*rt+3}], v{vL16}, s[{sWS}:{sWS+3}], s{sT0} offen", ("k", j))


def tr_reads(a, j):
    fb = FB + 8 * (j % 2)
    for ct in range(2):
        if j < 28:
            off = W2_RING + (j % NSL) * 2048
        else:
            jj = j - 28
            hh, sq = divmod(jj, 2)
            off = WO_IMG + (28 * hh + 16 * sq) * 128
        a(f"ds_read_b64_tr_b16 v[{fb+4*ct}:{fb+4*ct+1}], v{vTr+ct} offset:{off}")
        a(f"ds_read_b64_tr_b16 v[{fb+4*ct+2}:{fb+4*ct+3}], v{vTr+ct} offset:{off+1024}")


def gen_k3(name):
    a = Asm()
    a(f"""
    s_cmp_ge_u32 s2, 256
    s_cbranch_scc1 L_{name}_end
    s_and_b32 s3, s2, 7
    s_lshr_b32 s{sT0}, s2, 3
    s_cmp_ge_u32 s{sT0}, 28
    s_cbranch_scc1 L_{name}_end
    s_load_dwordx2 s[{sP}:{sP+1}], s[0:1], 0
    s_load_dwordx2 s[{sP+2}:{sP+3}], s[0:1], 16
    s_load_dwordx4 s[{sP+4}:{sP+7}], s[0:1], 48
    s_load_dwordx2 s[{sP+8}:{sP+9}], s[0:1], 72
    s_lshl_b32 s{sRP}, s3, 2
    s_and_b32 s{sT1}, s{sT0}, 3
    s_add_u32 s{sRP}, s{sRP}, s{sT1}
    s_lshr_b32 s{sCG}, s{sT0}, 2
    v_lshrrev_b32 v1, 6, v0
    v_and_b32 v{vL}, 63, v0
    s_nop 0
    v_readfirstlane_b32 s{sW}, v1
    v_lshlrev_b32 v{vL16}, 4, v{vL}
    s_waitcnt lgkmcnt(0)
    """)
    srd(a, sX, sP, S * D * 2)
    srd(a, sWO, sP + 2, D * D * 2)
    srd(a, sW2, sP + 4, F * D * 2)
    srd(a, sOUT, sP + 6, S * D * 2)
    srd(a, sWS, sP + 8, WS_SIZE)
    t0, t1, t2, t3, t4, t5 = TT, TT + 1, TT + 2, TT + 3, TT + 4, TT + 5
    a(f"""
    v_lshrrev_b32 v{t0}, 3, v{vL}
    v_and_b32 v{t1}, 7, v{vL}
    v_bfe_u32 v{t2}, v{vL}, 4, 1
    v_lshlrev_b32 v{t2}, 2, v{t2}
    v_xor_b32 v{t1}, v{t1}, v{t2}
    v_lshlrev_b32 v{t1}, 4, v{t1}
    v_mul_u32_u24 v{t0}, 896, v{t0}
    v_add_u32 v{vD}, v{t0}, v{t1}
    s_mul_i32 s{sM0}, s{sW}, {WREG}
    s_lshl_b32 s{sT1}, s{sCG}, 7
    s_mul_i32 s{sD}, s{sW}, {28*16*896}
    s_add_u32 s{sD}, s{sD}, s{sT1}
    s_mul_i32 s{sT2}, s{sW}, {112*896}
    s_add_u32 s{sT2}, s{sT2}, s{sT1}
    """)
    for q in range(15):
        a(f"s_add_u32 m0, s{sM0}, {WO_IMG + q*1024}")
        a(f"s_add_u32 s{sT0}, s{sT2}, {q*8*896}")
        a.vm(f"buffer_load_dwordx4 v{vD}, s[{sWO}:{sWO+3}], s{sT0} offen lds", ("wo", q))
    a(f"""
    s_lshl_b32 s{sT0}, s{sRP}, 1
    s_mul_i32 s{sH0}, s{sT0}, {112*1024}
    s_mul_i32 s{sT1}, s{sW}, {28*1024}
    s_add_u32 s{sH0}, s{sH0}, s{sT1}
    s_add_u32 s{sH1}, s{sH0}, {112*1024}
    s_lshl_b32 s{sO0}, s{sT0}, 15
    s_lshl_b32 s{sT1}, s{sW}, 13
    s_add_u32 s{sO0}, s{sO0}, s{sT1}
    s_add_u32 s{sO0}, s{sO0}, {hex(WS_O)}
    s_add_u32 s{sO1}, s{sO0}, 32768
    """)
    for j in range(PD):
        issue_loads(a, j)
    a(f"""
    v_bfe_u32 v{t0}, v{vL}, 2, 2
    v_lshrrev_b32 v{t1}, 5, v{vL}
    v_bfe_u32 v{t2}, v{vL}, 4, 1
    v_bfe_u32 v{t3}, v{vL}, 1, 1
    v_and_b32 v{t4}, 1, v{vL}
    v_lshl_add_u32 v{t5}, v{t1}, 2, v{t0}
    v_lshlrev_b32 v{t5}, 7, v{t5}
    v_lshl_add_u32 v{t5}, v{t4}, 3, v{t5}
    v_add_u32 v{t5}, s{sM0}, v{t5}
    v_lshl_add_u32 v{t2}, v{t2}, 1, v{t3}
    v_lshrrev_b32 v{t0}, 1, v{t0}
    v_lshlrev_b32 v{t0}, 2, v{t0}
    """)
    for ct in range(2):
        a(f"""
        v_add_u32 v{t3}, {4*ct}, v{t2}
        v_xor_b32 v{t3}, v{t3}, v{t0}
        v_lshl_add_u32 v{vTr+ct}, v{t3}, 4, v{t5}
        """)
    a(f"""
    s_lshr_b32 s{sT0}, s{sW}, 1
    s_lshl_b32 s{sT1}, s{sRP}, 1
    s_add_u32 s{sT0}, s{sT0}, s{sT1}
    s_lshl_b32 s{sT0}, s{sT0}, 5
    s_mul_i32 s{sT0}, s{sT0}, 896
    s_lshl_b32 s{sT1}, s{sCG}, 7
    s_add_u32 s{sT0}, s{sT0}, s{sT1}
    s_and_b32 s{sT1}, s{sW}, 1
    s_lshl_b32 s{sT1}, s{sT1}, 6
    s_add_u32 s{sT0}, s{sT0}, s{sT1}
    v_and_b32 v{t0}, 31, v{vL}
    v_mul_u32_u24 v{t0}, 896, v{t0}
    v_add_u32 v{t0}, s{sT0}, v{t0}
    v_lshl_add_u32 v{vXo}, v{t1}, 3, v{t0}
    v_lshl_add_u32 v{vXo+1}, v{t1}, 4, v{t0}
    """)
    acc_of = lambda rt, ct: ACC + 16 * (2 * rt + ct)
    a.vm_wait(("k", 0))
    tr_reads(a, 0)
    NK = 36
    for j in range(NK):
        if j + PD < NK:
            issue_loads(a, j + PD)
        if j == NK - PD:
            for i in range(4):
                a.vm(f"buffer_load_dwordx2 v[{XR+2*i}:{XR+2*i+1}], v{vXo}, s[{sX}:{sX+3}], 0 offen offset:{16*i}", ("x", i))
        if j + 1 < NK:
            a.vm_wait(("k", j + 1))
            tr_reads(a, j + 1)
            a("s_waitcnt lgkmcnt(4)")
        else:
            a("s_waitcnt lgkmcnt(0)")
        hb, fb = HB + 8 * (j % 7), FB + 8 * (j % 2)
        for rt in range(2):
            for ct in range(2):
                acc = acc_of(rt, ct)
                c = "0" if j == 0 else f"v[{acc}:{acc+15}]"
                a(f"v_mfma_f32_32x32x16_bf16 v[{acc}:{acc+15}], v[{fb+4*ct}:{fb+4*ct+3}], v[{hb+4*rt}:{hb+4*rt+3}], {c}")
    a(f"""
    s_barrier
    s_lshl_b32 s{sT0}, s{sW}, 14
    v_add_u32 v{vT}, s{sT0}, v{vL16}
    s_lshl_b32 s{sT0}, s{sW}, 12
    v_add_u32 v{vT+1}, s{sT0}, v{vL16}
    s_nop 7
    s_nop 3
    """)
    for q in range(4):
        for rq in range(4):
            r = ACC + 16 * q + 4 * rq
            a(f"ds_write_b128 v{vT}, v[{r}:{r+3}] offset:{q*4096 + rq*1024}")
    a("s_waitcnt lgkmcnt(0)")
    a("s_barrier")
    for sw in range(4):
        for rq in range(4):
            r = ACC + 16 * sw + 4 * rq
            a(f"ds_read_b128 v[{r}:{r+3}], v{vT+1} offset:{sw*16384 + rq*1024}")
    Rr = HB
    a("s_waitcnt lgkmcnt(8)")
    for r in range(16):
        a(f"v_add_f32 v{Rr+r}, v{ACC+r}, v{ACC+16+r}")
    a("s_waitcnt lgkmcnt(4)")
    for r in range(16):
        a(f"v_add_f32 v{Rr+r}, v{Rr+r}, v{ACC+32+r}")
    a("s_waitcnt lgkmcnt(0)")
    for r in range(16):
        a(f"v_add_f32 v{Rr+r}, v{Rr+r}, v{ACC+48+r}")
    a("s_waitcnt vmcnt(0)")
    for i in range(4):
        for h in range(2):
            x = XR + 2 * i + h
            a(f"v_lshlrev_b32 v{TT}, 16, v{x}")
            a(f"v_and_b32 v{TT+1}, 0xffff0000, v{x}")
            a(f"v_add_f32 v{Rr+4*i+2*h}, v{Rr+4*i+2*h}, v{TT}")
            a(f"v_add_f32 v{Rr+4*i+2*h+1}, v{Rr+4*i+2*h+1}, v{TT+1}")
    for r in range(8):
        a(f"v_cvt_pk_bf16_f32 v{TT+4+r}, v{Rr+2*r}, v{Rr+2*r+1}")
    a("s_nop 1")
    for ii in range(2):
        b = TT + 4 + 4 * ii
        a(f"v_permlane32_swap_b32 v{b}, v{b+2}")
        a(f"v_permlane32_swap_b32 v{b+1}, v{b+3}")
    for ii in range(2):
        b = TT + 4 + 4 * ii
        a(f"buffer_store_dwordx4 v[{b}:{b+3}], v{vXo+1}, s[{sOUT}:{sOUT+3}], 0 offen offset:{32*ii}")
    a.label(f"L_{name}_end")
    a("s_endpgm")
    return a
```

```python
import sys
from asmlib import check_hazards
from common import *
import k1, k2, k3

NAME = "parallel_sum__softmax_full_mha__glu_gated_swiglu__prompt"
HEAD = open("cdna_kernels/%s.s.ref" % NAME).read().split("; Override launch")[0]

def build():
    kernels = [
        ("phase_a_kernel", k1.gen_k1, 256, 512, k1.LDS_K1, 256, 256),
        ("phase_b_kernel", k2.gen_k2, 256, 256, k2.LDS_K2, 256, 256),
        ("phase_c_kernel", k3.gen_k3, 256, 256, k3.LDS_K3, 256, 256),
    ]
    out = HEAD
    for name, _, grid, block, lds, _, _ in kernels:
        out += f"; @launch kernel={name} grid=({grid},1,1) block=({block},1,1) lds={lds}\n"
    out += '.amdgcn_target "amdgcn-amd-amdhsa--gfx950"\n.text\n'
    bad = 0
    for name, gen, *_ in kernels:
        a = gen(name)
        t = a.text()
        probs = check_hazards(t, name)
        for p in probs[:30]:
            print(p)
        bad += len(probs)
        out += kernel_header(name) + t
    out += '.section .rodata,"a"\n'
    for name, _, _, _, _, vg, acc in kernels:
        out += ".p2align 6\n" + kernel_desc(name, vg, acc)
    if bad:
        raise SystemExit(f"{bad} hazard problems")
    return out

if __name__ == "__main__":
    dst = sys.argv[1] if len(sys.argv) > 1 else "cdna_kernels/%s.s" % NAME
    open(dst, "w").write(build())
    print("wrote", dst)
```

```python
import re


class Asm:
    def __init__(self):
        self.lines = []
        self.vm_ops = []

    def __call__(self, text):
        for ln in text.strip("\n").split("\n"):
            ln = ln.strip()
            if ln:
                self.lines.append(ln)

    def label(self, name):
        self.lines.append(name + ":")

    def comment(self, text):
        self.lines.append("; " + text)

    def vm(self, text, tag=None):
        self(text)
        self.vm_ops.append(tag)

    def vm_count_after(self, tag):
        idx = [i for i, t in enumerate(self.vm_ops) if t == tag]
        assert idx, f"no vm op tagged {tag}"
        return len(self.vm_ops) - 1 - idx[-1]

    def vm_wait(self, tag, extra=""):
        n = self.vm_count_after(tag)
        assert n <= 63, n
        self(f"s_waitcnt vmcnt({n}){extra}")

    def vm_mark(self, name):
        if not hasattr(self, "marks"):
            self.marks = {}
        self.marks[name] = len(self.vm_ops)

    def vm_wait_mark(self, name):
        n = len(self.vm_ops) - self.marks[name]
        assert 0 <= n <= 63
        self(f"s_waitcnt vmcnt({n})")

    def text(self):
        out = []
        for ln in self.lines:
            if ln.endswith(":") or ln.startswith("."):
                out.append(ln)
            else:
                out.append("    " + ln)
        return "\n".join(out) + "\n"


TRANS = ("v_exp_f32", "v_log_f32", "v_rcp_f32", "v_rsq_f32", "v_sqrt_f32", "v_sin_f32", "v_cos_f32",
         "v_rcp_iflag_f32", "v_exp_f16", "v_rcp_f16")


def regs_of(tok):
    tok = tok.strip()
    tok = tok.lstrip("-").strip("|")
    tok = re.sub(r"^abs\((.*)\)$", r"\1", tok)
    m = re.fullmatch(r"([vas])(\d+)", tok)
    if m:
        return {(m.group(1), int(m.group(2)))}
    m = re.fullmatch(r"([vas])\[(\d+):(\d+)\]", tok)
    if m:
        return {(m.group(1), i) for i in range(int(m.group(2)), int(m.group(3)) + 1)}
    if tok in ("vcc", "vcc_lo", "vcc_hi"):
        return {("vcc", 0)}
    if tok in ("exec", "exec_lo", "exec_hi"):
        return {("exec", 0)}
    if tok == "m0":
        return {("m0", 0)}
    return set()


class Ins:
    def __init__(self, text, idx):
        self.text = text
        self.idx = idx
        body = text.split(";")[0].strip()
        parts = body.split(None, 1)
        self.op = parts[0]
        rest = parts[1] if len(parts) > 1 else ""
        toks = [t.strip() for t in rest.split(",")] if rest else []
        self.mods = ""
        if toks:
            last = toks[-1].split()
            if last:
                toks[-1] = last[0]
                self.mods = " ".join(last[1:])
        self.toks = toks
        op = self.op
        self.is_mfma = op.startswith("v_mfma")
        self.is_valu = op.startswith("v_") and not self.is_mfma
        self.is_salu = op.startswith("s_")
        self.is_ds = op.startswith("ds_")
        self.is_vmem = op.startswith(("buffer_", "global_", "flat_"))
        self.is_trans = any(op.startswith(t) for t in TRANS)
        self.is_dot = op.startswith("v_dot")
        self.is_dpp = ("quad_perm" in text or "row_" in text or "_dpp" in op)
        self.is_perml = op.startswith("v_permlane")
        self.is_lds_dma = self.is_vmem and re.search(r"\blds\b", self.mods) is not None
        self.states = 1
        if op == "s_nop":
            self.states = int(toks[0], 0) + 1
        self.w = set()
        self.r = set()
        self.srcc = set()
        self.store_data = set()
        R = [regs_of(t) for t in toks]
        if self.is_mfma:
            self.w = R[0]
            self.r = R[1] | R[2] | R[3]
            self.ab = R[1] | R[2]
            self.srcc = R[3]
            self.passes = 8 if "32x32" in op else 4
        elif self.is_valu:
            if op.startswith("v_cmp"):
                self.w = R[0]
                self.r = set().union(*R[1:]) if len(R) > 1 else set()
            elif op.startswith("v_permlane") and "swap" in op:
                self.w = R[0] | R[1]
                self.r = R[0] | R[1]
            elif op.startswith(("v_add_co", "v_addc_co", "v_sub_co", "v_subb_co")):
                self.w = R[0] | R[1]
                self.r = set().union(*R[2:])
            else:
                self.w = R[0]
                self.r = set().union(*R[1:]) if len(R) > 1 else set()
                if op.startswith(("v_fmac", "v_dot2c", "v_writelane")) or "UNUSED_PRESERVE" in text:
                    self.r |= R[0]
                if op.startswith("v_cndmask") and len(R) == 3:
                    self.r |= {("vcc", 0)}
                if self.is_dpp:
                    self.r |= R[0]
        elif self.is_ds:
            if op.startswith(("ds_read", "ds_bpermute", "ds_permute", "ds_swizzle")):
                self.w = R[0]
                self.r = set().union(*R[1:]) if len(R) > 1 else set()
            else:
                self.r = set().union(*R)
        elif self.is_vmem:
            if op.startswith(("buffer_inv", "buffer_wbl2")):
                pass
            elif self.is_lds_dma:
                self.r = set().union(*R) | {("m0", 0)}
            elif "load" in op:
                self.w = R[0]
                self.r = set().union(*R[1:])
            elif "atomic" in op:
                self.r = set().union(*R)
                if "sc0" in self.mods:
                    self.w = R[0] if op.startswith("buffer") else R[0]
            else:
                self.r = set().union(*R)
                if "x4" in op or "x3" in op:
                    self.store_data = R[0] if op.startswith("buffer") else R[1]
        elif self.is_salu:
            if op.startswith(("s_cmp", "s_waitcnt", "s_nop", "s_barrier", "s_branch", "s_cbranch", "s_endpgm",
                              "s_sleep", "s_setprio", "s_bitcmp")):
                self.r = set().union(*R) if R else set()
            else:
                self.w = R[0] if R else set()
                self.r = set().union(*R[1:]) if len(R) > 1 else set()
                if "saveexec" in op:
                    self.w |= {("exec", 0)}


def vg(s):
    return {x for x in s if x[0] in ("v", "a")}


def sg(s):
    return {x for x in s if x[0] in ("s", "vcc")}


def required(p, c):
    need = 0
    if p.is_mfma:
        P = p.passes
        if c.is_mfma:
            if c.srcc & p.w:
                if not (c.srcc == p.w and c.passes == P):
                    need = max(need, P + 2)
            if c.ab & p.w:
                need = max(need, P + 4)
            if (c.w & p.w) and not (c.srcc == p.w):
                need = max(need, P + 2)
        elif c.is_valu:
            if (c.r | c.w) & p.w:
                need = max(need, P + 4)
            if c.w & p.srcc:
                need = max(need, P - 1)
        elif c.is_ds or c.is_vmem:
            if (c.r | c.w) & p.w:
                need = max(need, P + 4)
    if p.is_valu:
        pw = vg(p.w)
        if c.is_mfma and (c.r & pw):
            need = max(need, 2)
        if c.is_valu:
            if p.is_trans and not c.is_trans and (c.r & pw):
                need = max(need, 1)
            if (c.is_perml or c.is_dpp) and (c.r & pw):
                need = max(need, 2)
            if c.op.startswith(("v_readlane", "v_readfirstlane")) and (c.r & pw):
                need = max(need, 1)
            if p.is_dot and ((c.r | c.w) & pw):
                same = c.op == p.op
                if not same:
                    need = max(need, 3)
                else:
                    ab = regs_of(c.toks[1]) | regs_of(c.toks[2])
                    if ab & pw:
                        need = max(need, 3)
            if sg(p.w) & c.r:
                need = max(need, 4 if c.op.startswith(("v_readlane", "v_writelane")) else 2)
            if "sdwa" in p.op and "dst_sel:DWORD" not in p.text and (c.r & pw):
                need = max(need, 1)
        if c.is_vmem and (sg(p.w) & c.r):
            need = max(need, 5)
        if c.is_salu and (sg(p.w) & c.r):
            need = max(need, 1)
        if p.is_dot and (c.is_ds or c.is_vmem) and (c.r & pw):
            need = max(need, 3)
    if p.is_salu and ("m0", 0) in p.w and c.is_lds_dma:
        need = max(need, 1)
    if p.store_data:
        if c.is_valu and (c.w & p.store_data):
            need = max(need, 2)
        elif (c.w & p.store_data) and not c.is_salu:
            need = max(need, 1)
    return need


def check_hazards(text, name=""):
    ins = []
    labels = {}
    for ln in text.split("\n"):
        s = ln.split(";")[0].strip()
        if not s or s.startswith("."):
            continue
        if s.endswith(":"):
            labels[s[:-1]] = len(ins)
            continue
        ins.append(Ins(s, len(ins)))
    n = len(ins)
    preds = [[] for _ in range(n + 1)]
    for i, x in enumerate(ins):
        fall = x.op not in ("s_branch", "s_endpgm", "s_setpc_b64")
        if fall and i + 1 <= n:
            preds[i + 1].append(i)
        if x.op.startswith(("s_branch", "s_cbranch")):
            t = labels.get(x.toks[0])
            if t is not None:
                preds[t].append(i)
    MAXD = 20
    problems = []
    for i, c in enumerate(ins):
        stack = [(p, 0) for p in preds[i]]
        seen = {}
        while stack:
            j, d = stack.pop()
            if d >= MAXD or seen.get(j, 99) <= d:
                continue
            seen[j] = d
            p = ins[j]
            need = required(p, c)
            if need > d:
                problems.append(f"{name}: need {need} have {d}: [{p.text}] -> [{c.text}] (#{j}->#{i})")
            nd = d + p.states
            for q in preds[j]:
                stack.append((q, nd))
    return problems
```

```python
S, D, F = 2048, 448, 1792
WS_H = 0x0
WS_Q = 0x700000
WS_K = 0x8C0000
WS_V = 0xA80000
WS_O = 0xC40000
WS_P = 0xE40000
WS_FLAGS = 0x1200000
WS_SIZE = 268435456
SRD3 = 0x20000
QSCALE = (28 ** -0.5) * 1.4426950408889634
LOG2E = 1.4426950408889634

import struct
def f32(x):
    return "0x%08x" % struct.unpack("<I", struct.pack("<f", x))[0]

def kernel_header(name):
    return f""".globl {name}
.p2align 8
.type {name},@function
{name}:
"""

def kernel_desc(name, vgpr, accum, sgpr=102):
    return f""".amdhsa_kernel {name}
  .amdhsa_next_free_vgpr {vgpr}
  .amdhsa_next_free_sgpr {sgpr}
  .amdhsa_accum_offset {accum}
  .amdhsa_group_segment_fixed_size 0
  .amdhsa_kernarg_size 80
  .amdhsa_user_sgpr_count 2
  .amdhsa_user_sgpr_kernarg_segment_ptr 1
  .amdhsa_system_sgpr_workgroup_id_x 1
.end_amdhsa_kernel
"""

def srd(a, dst, ptr, size):
    a(f"s_mov_b32 s{dst}, s{ptr}")
    a(f"s_and_b32 s{dst+1}, s{ptr+1}, 0xffff")
    a(f"s_mov_b32 s{dst+2}, {size}")
    a(f"s_mov_b32 s{dst+3}, {hex(SRD3)}")


STAMPS = False
FINE = False
DBG = set()
WS_STAMP = 0x1400000
vSTAMP = 255

def stamp(a, i, real=False):
    if not STAMPS:
        return
    op = "s_memrealtime" if real else "s_memtime"
    a(f"{op} s[98:99]")
    a("s_waitcnt lgkmcnt(0)")
    a(f"v_writelane_b32 v{vSTAMP}, s98, {i}")

def stamp_flush(a, ws_srd, wave_sgpr, vtmp, lane_reg):
    if not STAMPS:
        return
    a(f"s_lshl_b32 s96, s2, 3")
    a(f"s_add_u32 s96, s96, s{wave_sgpr}")
    a(f"s_lshl_b32 s96, s96, 8")
    a(f"s_add_u32 s96, s96, {hex(WS_STAMP)}")
    a(f"v_lshlrev_b32 v{vtmp}, 2, v{lane_reg}")
    a(f"buffer_store_dword v{vSTAMP}, v{vtmp}, s[{ws_srd}:{ws_srd+3}], s96 offen")
    a("s_waitcnt vmcnt(0)")

WS_QF = WS_FLAGS
WS_HF = WS_FLAGS + 0x1000
WS_OF = WS_FLAGS + 0x2000
SPIN_LIMIT = 200000
```

```python
import common
from common import *
from regs import *

RING_SLOT = 16384
MISC = 147456
RTAB = 163328

vL = 0
vXoff, vXw, vRw = 1, 2, 3
vXr = 4
vDq, vDf = 8, 9
vTrB = 10
vTf = 12
vTr = 14
XF = 16
A0, A1 = 128, 160
FB = 192
T = 216
vR, vNrl, vRR2 = 240, 241, 242
vL16, vVst, vVw, vVr, vVsw, vSc = 243, 244, 245, 246, 247, 248
vC0, vC1, vOnes = A0, A0 + 1, A0 + 2
vS = A0 + 4
LT = A0 + 16


def slot_base(stage):
    if stage == 0: return 7 * RING_SLOT
    if stage == 1: return 8 * RING_SLOT
    if stage == 2: return MISC
    return ((stage - 3) % 9) * RING_SLOT


def roles(a):
    a(f"""
    s_and_b32 s{sXCD}, s2, 7
    s_lshr_b32 s{sI}, s2, 3
    s_lshr_b32 s{sT1}, s{sXCD}, 1
    s_lshl_b32 s{sT1}, s{sT1}, 2
    s_and_b32 s{sT2}, s{sI}, 3
    s_add_u32 s{sRB}, s{sT1}, s{sT2}
    s_and_b32 s{sT1}, s{sXCD}, 1
    s_mul_i32 s{sT1}, s{sT1}, 7
    s_lshr_b32 s{sT3}, s{sI}, 2
    s_add_u32 s{sG}, s{sT1}, s{sT3}
    s_lshl_b32 s{sT2}, s{sT2}, 1
    s_add_u32 s{sT2}, s{sT2}, s{sT3}
    s_cmp_ge_u32 s{sT2}, 7
    s_cselect_b32 s{sT3}, 7, 0
    s_sub_u32 s{sROT}, s{sT2}, s{sT3}
    v_lshrrev_b32 v1, 6, v0
    v_and_b32 v{vL}, 63, v0
    s_nop 0
    v_readfirstlane_b32 s{sW}, v1
    s_nop 3
    s_and_b32 s{sRT}, s{sW}, 3
    s_lshr_b32 s{sCH}, s{sW}, 2
    s_lshl_b32 s{sRTg}, s{sRB}, 2
    s_add_u32 s{sRTg}, s{sRTg}, s{sRT}
    """)
    for j in range(7):
        a(f"""
        s_add_u32 s{sT1}, s{sROT}, {j}
        s_cmp_ge_u32 s{sT1}, 7
        s_cselect_b32 s{sT2}, 7, 0
        s_sub_u32 s{sT1}, s{sT1}, s{sT2}
        s_lshl_b32 s{sKB+j}, s{sT1}, 7
        """)


def x_loads(a):
    a(f"""
    s_lshl_b32 s{sT1}, s{sRB}, 7
    s_lshl_b32 s{sT2}, s{sW}, 4
    s_add_u32 s{sT1}, s{sT1}, s{sT2}
    s_mul_i32 s{sXo0}, s{sT1}, 896
    s_add_u32 s{sXo1}, s{sXo0}, {8*896}
    v_lshrrev_b32 v20, 3, v{vL}
    v_and_b32 v21, 7, v{vL}
    v_mul_u32_u24 v22, 896, v20
    v_lshlrev_b32 v23, 4, v21
    v_add_u32 v{vXoff}, v22, v23
    """)
    order = [(0, j) for j in range(7)] + [(1, j) for j in range(7)]
    for gq, j in order:
        if (gq, j) == (1, 0):
            a("s_barrier")
        r = XF + 28 * gq + 4 * j
        a(f"s_add_u32 s{sT1}, s{sXo0+gq}, s{sKB+j}")
        a.vm(f"buffer_load_dwordx4 v[{r}:{r+3}], v{vXoff}, s[{sX}:{sX+3}], s{sT1} offen", ("x", gq, j))


def addr_setup(a):
    t0, t1, t2, t3, t4, t5 = T, T + 1, T + 2, T + 3, T + 4, T + 5
    a(f"""
    v_lshrrev_b32 v{t0}, 3, v{vL}
    v_and_b32 v{t1}, 7, v{vL}
    s_and_b32 s{sT1}, s{sW}, 1
    v_xor_b32 v{t1}, v{t1}, v{t0}
    v_xor_b32 v{t1}, s{sT1}, v{t1}
    v_lshlrev_b32 v{t1}, 4, v{t1}
    v_lshlrev_b32 v{t2}, 7, v{t0}
    v_add_u32 v{t1}, v{t1}, v{t2}
    s_lshr_b32 s{sT2}, s{sW}, 1
    s_mul_i32 s{sT2}, s{sT2}, 28672
    s_mul_i32 s{sT3}, s{sT1}, 14336
    s_add_u32 s{sT2}, s{sT2}, s{sT3}
    v_add_u32 v{vXw}, s{sT2}, v{t1}
    s_lshl_b32 s{sT2}, s{sW}, 6
    s_add_u32 s{sT2}, s{sT2}, {RTAB}
    v_lshlrev_b32 v{t2}, 2, v{t0}
    v_add_u32 v{vRw}, s{sT2}, v{t2}
    v_mov_b32 v{vC0}, 0x00003f80
    v_mov_b32 v{vC1}, 0x3f800000
    v_mov_b32 v{vOnes}, 0x3f803f80
    """)
    a(f"""
    s_and_b32 s{sQ4}, s{sW}, 3
    v_lshrrev_b32 v{t0}, 4, v{vL}
    v_and_b32 v{t1}, 15, v{vL}
    v_lshlrev_b32 v{t2}, 2, v{t0}
    v_xor_b32 v{t1}, v{t1}, v{t2}
    v_lshlrev_b32 v{t1}, 4, v{t1}
    s_lshl_b32 s{sT1}, s{sQ4}, 2
    v_add_u32 v{t0}, s{sT1}, v{t0}
    v_mul_u32_u24 v{t0}, 2688, v{t0}
    v_add_u32 v{vDq}, v{t0}, v{t1}
    v_lshrrev_b32 v{t0}, 3, v{vL}
    v_and_b32 v{t1}, 7, v{vL}
    v_bfe_u32 v{t2}, v{vL}, 4, 1
    s_lshr_b32 s{sT1}, s{sQ4}, 1
    s_lshl_b32 s{sT1}, s{sT1}, 1
    v_or_b32 v{t2}, s{sT1}, v{t2}
    v_lshlrev_b32 v{t2}, 1, v{t2}
    v_xor_b32 v{t1}, v{t1}, v{t2}
    v_lshlrev_b32 v{t1}, 4, v{t1}
    s_and_b32 s{sT1}, s{sQ4}, 1
    s_lshl_b32 s{sT1}, s{sT1}, 3
    v_add_u32 v{t0}, s{sT1}, v{t0}
    v_mul_u32_u24 v{t0}, 3584, v{t0}
    v_add_u32 v{vDf}, v{t0}, v{t1}
    """)
    a(f"""
    s_mul_i32 s{sT0}, s{sG}, 192
    s_and_b32 s{sT1}, s{sG}, 1
    s_lshl_b32 s{sT2}, s{sT1}, 6
    s_sub_u32 s{sT0}, s{sT0}, s{sT2}
    s_mul_i32 s{sT2}, s{sCH}, {16*2688}
    s_add_u32 s{sT0}, s{sT0}, s{sT2}
    s_lshl_b32 s{sT3}, s{sG}, 8
    s_mul_i32 s{sT2}, s{sCH}, {16*3584}
    s_add_u32 s{sT3}, s{sT3}, s{sT2}
    s_lshl_b32 s{sM0}, s{sCH}, 12
    s_lshl_b32 s{sT2}, s{sQ4}, 10
    s_add_u32 s{sM0}, s{sM0}, s{sT2}
    """)
    for st in range(7):
        a(f"""
        s_mul_i32 s{sT1}, s{sKB+st}, 1344
        s_add_u32 s{sRq+st}, s{sT1}, s{sT0}
        s_mul_i32 s{sT1}, s{sKB+st}, 1792
        s_add_u32 s{sRf+st}, s{sT1}, s{sT3}
        """)


def addr_setup2(a):
    t0, t1, t2, t3, t4, t5 = T, T + 1, T + 2, T + 3, T + 4, T + 5
    a(f"""
    v_and_b32 v{t0}, 31, v{vL}
    v_lshrrev_b32 v{t1}, 5, v{vL}
    v_and_b32 v{t2}, 7, v{t0}
    v_lshrrev_b32 v{t3}, 4, v{t0}
    v_xor_b32 v{t3}, v{t3}, v{t2}
    v_lshrrev_b32 v{t4}, 3, v{t0}
    v_mul_u32_u24 v{t4}, 7168, v{t4}
    v_lshlrev_b32 v{t2}, 7, v{t2}
    v_add_u32 v{t4}, v{t4}, v{t2}
    s_mul_i32 s{sT2}, s{sRT}, 28672
    v_add_u32 v{t4}, s{sT2}, v{t4}
    """)
    for sp in range(4):
        a(f"""
        v_add_u32 v{t5}, {2*sp}, v{t1}
        v_xor_b32 v{t5}, v{t5}, v{t3}
        v_lshlrev_b32 v{t5}, 4, v{t5}
        v_add_u32 v{vXr+sp}, v{t4}, v{t5}
        """)
    a(f"""
    v_bfe_u32 v{t0}, v{vL}, 2, 2
    v_lshrrev_b32 v{t1}, 5, v{vL}
    v_bfe_u32 v{t2}, v{vL}, 4, 1
    v_bfe_u32 v{t3}, v{vL}, 1, 1
    v_and_b32 v{t4}, 1, v{vL}
    v_lshl_add_u32 v{t5}, v{t1}, 3, v{t0}
    v_lshlrev_b32 v{t5}, 8, v{t5}
    v_lshl_add_u32 v{T+6}, v{t2}, 1, v{t3}
    v_lshl_add_u32 v{t5}, v{T+6}, 4, v{t5}
    v_lshl_add_u32 v{t5}, v{t4}, 3, v{t5}
    s_and_b32 s{sT1}, s{sG}, 1
    s_lshl_b32 s{sT2}, s{sCH}, 1
    s_add_u32 s{sT1}, s{sT1}, s{sT2}
    """)
    for tt in range(2):
        a(f"""
        s_add_u32 s{sT2}, s{sT1}, {tt}
        v_xor_b32 v{T+6}, s{sT2}, v{t0}
        v_lshl_add_u32 v{vTrB+tt}, v{T+6}, 6, v{t5}
        """)
    a(f"""
    v_lshl_add_u32 v{t5}, v{t1}, 3, v{t0}
    v_lshlrev_b32 v{t5}, 7, v{t5}
    v_lshl_add_u32 v{t5}, v{t2}, 11, v{t5}
    v_lshl_add_u32 v{t5}, v{t3}, 4, v{t5}
    v_lshl_add_u32 v{t5}, v{t4}, 3, v{t5}
    v_lshrrev_b32 v{T+6}, 1, v{t0}
    v_lshl_or_b32 v{T+6}, v{t2}, 1, v{T+6}
    s_lshl_b32 s{sT1}, s{sCH}, 1
    """)
    for tt in range(2):
        a(f"""
        s_add_u32 s{sT2}, s{sT1}, {tt}
        v_xor_b32 v{T+7}, s{sT2}, v{T+6}
        v_lshl_add_u32 v{vTf+tt}, v{T+7}, 5, v{t5}
        """)
    a(f"""
    v_lshlrev_b32 v{vL16}, 4, v{vL}
    v_and_b32 v{T+6}, 31, v{vL}
    v_mul_u32_u24 v{T+7}, 7168, v{t1}
    v_lshl_add_u32 v{vVst}, v{T+6}, 4, v{T+7}
    s_lshl_b32 s{sT1}, s{sW}, 11
    s_add_u32 s{sT1}, s{sT1}, {MISC}
    v_bfe_u32 v{T+7}, v{vL}, 1, 2
    v_lshlrev_b32 v{vVw}, 6, v{T+6}
    v_lshl_add_u32 v{vVw}, v{t1}, 3, v{vVw}
    v_add_u32 v{vVw}, s{sT1}, v{vVw}
    v_lshlrev_b32 v{vVsw}, 4, v{T+7}
    v_lshl_add_u32 v{t5}, v{t1}, 2, v{t0}
    v_lshlrev_b32 v{t5}, 6, v{t5}
    v_lshl_add_u32 v{T+6}, v{t2}, 1, v{t3}
    v_lshrrev_b32 v{T+7}, 1, v{t0}
    v_lshl_or_b32 v{T+7}, v{t1}, 1, v{T+7}
    v_xor_b32 v{T+6}, v{T+6}, v{T+7}
    v_lshl_add_u32 v{t5}, v{T+6}, 4, v{t5}
    v_lshl_add_u32 v{t5}, v{t4}, 3, v{t5}
    v_add_u32 v{vVr}, s{sT1}, v{t5}
    """)
    for tt in range(2):
        a(f"""
        s_mul_i32 s{sT0}, s{sG}, 3
        s_lshl_b32 s{sT1}, s{sCH}, 1
        s_add_u32 s{sT0}, s{sT0}, s{sT1}
        s_add_u32 s{sTq+tt}, s{sT0}, {tt}
        s_cmp_ge_u32 s{sTq+tt}, 14
        s_cselect_b32 s{sSc+tt}, 1.0, {f32(QSCALE)}
        """)


def dma_op(a, stage, j):
    p, st = divmod(stage, 7)
    if "nodma" in common.DBG and stage >= 3:
        a.vm_ops.append(("st", stage))
        return
    a(f"s_add_u32 m0, s{sM0}, {slot_base(stage) + 2*j*4096}")
    if p == 0:
        a(f"s_add_u32 s{sT0}, s{sRq+st}, {2*j*16*2688}")
        a.vm(f"buffer_load_dwordx4 v{vDq}, s[{sWQ}:{sWQ+3}], s{sT0} offen lds", ("st", stage))
    else:
        a(f"s_add_u32 s{sT0}, s{sRf+st}, {2*j*16*3584 + (p-1)*128}")
        a.vm(f"buffer_load_dwordx4 v{vDf}, s[{sWF}:{sWF+3}], s{sT0} offen lds", ("st", stage))


def dma_prologue(a, name):
    a(f"s_cmp_eq_u32 s{sCH}, 0")
    a(f"s_cbranch_scc0 L_{name}_pdma")
    for stage, j in ((0, 0), (0, 1), (1, 0), (1, 1), (2, 0)):
        for ch in range(2):
            a(f"s_add_u32 m0, s{sM0}, {slot_base(stage) + 2*j*4096 + ch*4096}")
            a(f"s_add_u32 s{sT0}, s{sRq+stage}, {(2*j + ch)*16*2688}")
            a(f"buffer_load_dwordx4 v{vDq}, s[{sWQ}:{sWQ+3}], s{sT0} offen lds")
    a.label(f"L_{name}_pdma")


def layernorm(a, after_group):
    inv = f32(1.0 / D)
    for gq in range(2):
        X = XF + 28 * gq
        s1a, s1b, s2a, s2b, mean, var = vS, vS + 1, vS + 2, vS + 3, vS + 4, vS + 5
        for j in range(7):
            a.vm_wait(("x", gq, j))
            for r in range(4):
                x = X + 4 * j + r
                first = j == 0 and r < 2
                d1 = s1a if r % 2 == 0 else s1b
                d2 = s2a if r % 2 == 0 else s2b
                a(f"v_dot2_f32_bf16 v{d1}, v{x}, v{vOnes}, {'0' if first else 'v%d' % d1}")
                a(f"v_dot2_f32_bf16 v{d2}, v{x}, v{x}, {'0' if first else 'v%d' % d2}")
        after_group(gq, 0)
        a(f"""
        s_nop 2
        v_add_f32 v{s1a}, v{s1a}, v{s1b}
        v_add_f32 v{s2a}, v{s2a}, v{s2b}
        s_nop 0
        v_add_f32_dpp v{s1a}, v{s1a}, v{s1a} quad_perm:[1,0,3,2] row_mask:0xf bank_mask:0xf
        v_add_f32_dpp v{s2a}, v{s2a}, v{s2a} quad_perm:[1,0,3,2] row_mask:0xf bank_mask:0xf
        s_nop 0
        v_add_f32_dpp v{s1a}, v{s1a}, v{s1a} quad_perm:[2,3,0,1] row_mask:0xf bank_mask:0xf
        v_add_f32_dpp v{s2a}, v{s2a}, v{s2a} quad_perm:[2,3,0,1] row_mask:0xf bank_mask:0xf
        s_nop 0
        v_add_f32_dpp v{s1a}, v{s1a}, v{s1a} row_half_mirror row_mask:0xf bank_mask:0xf
        v_add_f32_dpp v{s2a}, v{s2a}, v{s2a} row_half_mirror row_mask:0xf bank_mask:0xf
        v_mul_f32 v{mean}, {inv}, v{s1a}
        v_mul_f32 v{var}, {inv}, v{s2a}
        v_fma_f32 v{var}, -v{mean}, v{mean}, v{var}
        v_max_f32 v{var}, 0, v{var}
        v_add_f32 v{var}, {f32(1e-5)}, v{var}
        v_rsq_f32 v{var}, v{var}
        v_sub_f32 v{mean}, 0, v{mean}
        ds_write_b32 v{vRw}, v{var} offset:{32*gq}
        """)
        for j in range(7):
            for r in range(4):
                x = X + 4 * j + r
                a(f"v_dot2_f32_bf16 v{LT+2*r}, v{x}, v{vC0}, v{mean}")
                a(f"v_dot2_f32_bf16 v{LT+2*r+1}, v{x}, v{vC1}, v{mean}")
            for r in range(4):
                x = X + 4 * j + r
                a(f"v_cvt_pk_bf16_f32 v{x}, v{LT+2*r}, v{LT+2*r+1}")
            x = X + 4 * j
            a(f"ds_write_b128 v{vXw}, v[{x}:{x+3}] offset:{gq*7168 + j*1024}")
        after_group(gq, 1)


def read_frags(a):
    for s in range(28):
        j, sp = divmod(s, 4)
        r = XF + 4 * s
        a(f"ds_read_b128 v[{r}:{r+3}], v{vXr+sp} offset:{j*1024}")
    a(f"""
    v_and_b32 v{T}, 31, v{vL}
    s_lshl_b32 s{sT1}, s{sRT}, 7
    s_add_u32 s{sT1}, s{sT1}, {RTAB}
    v_lshlrev_b32 v{T}, 2, v{T}
    v_add_u32 v{T}, s{sT1}, v{T}
    ds_read_b32 v{vR}, v{T}
    s_waitcnt lgkmcnt(0)
    v_mul_f32 v{vNrl}, {f32(-LOG2E)}, v{vR}
    v_mul_f32 v{vRR2}, v{vR}, v{vR}
    """)


def tr_reads(a, n, ntiles):
    stage, kin = divmod(n, 4)
    p = stage // 7
    if kin == 0:
        base = vTrB if p == 0 else vTf
        for tt in range(ntiles):
            a(f"v_add_u32 v{vTr+tt}, {slot_base(stage)}, v{base+tt}")
    second = 1024 if p == 0 else 512
    for tt in range(ntiles):
        r = FB + 8 * (n % 3) + 4 * tt
        if "notr" in common.DBG:
            continue
        a(f"ds_read_b64_tr_b16 v[{r}:{r+1}], v{vTr+tt} offset:{kin*4096}")
        a(f"ds_read_b64_tr_b16 v[{r+2}:{r+3}], v{vTr+tt} offset:{kin*4096+second}")


def qkv_common(acc):
    L = []
    for tt in range(2):
        L.append(f"v_mul_f32 v{vSc}, s{sSc+tt}, v{vR}")
        for r in range(16):
            L.append(f"v_mul_f32 v{acc+16*tt+r}, v{vSc}, v{acc+16*tt+r}")
        for r in range(8):
            L.append(f"v_cvt_pk_bf16_f32 v{T+8*tt+r}, v{acc+16*tt+2*r}, v{acc+16*tt+2*r+1}")
    return L


def qkv_tails(a, name):
    for tt in range(2):
        P = T + 8 * tt
        lab = f"L_{name}_qt{tt}"
        if tt == 1:
            a(f"s_cmp_eq_u32 s{sCH}, 1")
            a(f"s_cbranch_scc1 {lab}_done")
        a(f"""
        s_cmp_ge_u32 s{sTq+tt}, 28
        s_cbranch_scc1 {lab}_v
        s_cmp_ge_u32 s{sTq+tt}, 14
        s_cselect_b32 s{sT1}, 14, 0
        s_cselect_b32 s{sT2}, {hex(WS_K-WS_Q)}, 0
        s_add_u32 s{sT2}, s{sT2}, {hex(WS_Q)}
        s_sub_u32 s{sT1}, s{sTq+tt}, s{sT1}
        s_lshl_b32 s{sT1}, s{sT1}, 11
        s_add_u32 s{sT2}, s{sT2}, s{sT1}
        s_mul_i32 s{sT1}, s{sRTg}, 28672
        s_add_u32 s{sSt0}, s{sT2}, s{sT1}
        """)
        for ii in range(2):
            b = P + 4 * ii
            a(f"v_permlane32_swap_b32 v{b}, v{b+2}")
            a(f"v_permlane32_swap_b32 v{b+1}, v{b+3}")
        for ii in range(2):
            b = P + 4 * ii
            a(f"buffer_store_dwordx4 v[{b}:{b+3}], v{vL16}, s[{sWS}:{sWS+3}], s{sSt0} offen offset:{ii*1024} sc1")
        a(f"s_branch {lab}_done")
        a.label(f"{lab}_v")
        a(f"""
        s_sub_u32 s{sT1}, s{sTq+tt}, 28
        s_lshl_b32 s{sT1}, s{sT1}, 9
        s_mul_i32 s{sT2}, s{sRTg}, 28672
        s_add_u32 s{sT1}, s{sT1}, s{sT2}
        s_add_u32 s{sSt0}, s{sT1}, {hex(WS_V)}
        s_add_u32 s{sSt1}, s{sSt0}, 14336
        """)
        for i in range(4):
            a(f"v_xor_b32 v{T+16}, {16*i}, v{vVsw}")
            a(f"v_add_u32 v{T+16}, v{vVw}, v{T+16}")
            a(f"ds_write_b64 v{T+16}, v[{P+2*i}:{P+2*i+1}]")
        a("s_waitcnt lgkmcnt(0)")
        for sq in range(2):
            for h in range(2):
                r = P + 4 * sq + 2 * h
                a(f"ds_read_b64_tr_b16 v[{r}:{r+1}], v{vVr} offset:{sq*1024 + h*512}")
        a("s_waitcnt lgkmcnt(0)")
        a(f"buffer_store_dwordx4 v[{P}:{P+3}], v{vVst}, s[{sWS}:{sWS+3}], s{sSt0} offen sc1")
        a(f"buffer_store_dwordx4 v[{P+4}:{P+7}], v{vVst}, s[{sWS}:{sWS+3}], s{sSt1} offen sc1")
        a.label(f"{lab}_done")
    a.vm_mark("qkv")


def ffn_epi(acc, p):
    L = []
    for tt in range(2):
        A = acc + 16 * tt
        E = T + 8
        for r in range(8):
            L.append(f"v_mul_f32 v{T+r}, v{vNrl}, v{A+r}")
        for r in range(8):
            L.append(f"v_exp_f32 v{T+r}, v{T+r}")
        for r in range(8):
            L.append(f"v_mul_f32 v{E+r}, v{A+r}, v{A+8+r}")
        for r in range(8):
            L.append(f"v_add_f32 v{T+r}, 1.0, v{T+r}")
        for r in range(8):
            L.append(f"v_rcp_f32 v{T+r}, v{T+r}")
        for r in range(8):
            L.append(f"v_mul_f32 v{E+r}, v{vRR2}, v{E+r}")
        for r in range(8):
            L.append(f"v_mul_f32 v{E+r}, v{E+r}, v{T+r}")
        for r in range(4):
            L.append(f"v_cvt_pk_bf16_f32 v{T+16+r}, v{E+2*r}, v{E+2*r+1}")
        L.append(f"s_add_u32 s{sSt0}, s{sHst}, {(4*p + tt)*1024}")
        L.append(("vm", f"buffer_store_dwordx4 v[{T+16}:{T+19}], v{vL16}, s[{sWS}:{sWS+3}], s{sSt0} offen sc1", ("h", p, tt)))
    return L


def emit_fill(a, fill, k):
    for _ in range(k):
        if not fill:
            return
        x = fill.pop(0)
        if isinstance(x, tuple):
            a.vm(x[1], x[2])
        else:
            a(x)


class DmaPlan:
    def __init__(self):
        self.pending = []
        for st in range(2, 21):
            for j in range(2):
                if st == 2 and j == 0:
                    continue
                self.pending.append((st, j))

    @staticmethod
    def earliest(st):
        if "ffnlate" in common.DBG and 7 <= st <= 12:
            return 20 + 2 * (st - 7) if False else 20
        if "nobyte" in common.DBG:
            pass
        if st <= 9:
            return 0
        if st <= 11:
            return 4 * (st - 9)
        return 4 * (st - 8)

    def issue(self, a, n, limit):
        k = 0
        while self.pending and k < limit and self.earliest(self.pending[0][0]) <= n:
            st, j = self.pending.pop(0)
            dma_op(a, st, j)
            k += 1


def ksteps(a, plan, n0, n1, ntiles_of, acc, fill=None, fill_start=2, per=0, hook=None):
    for n in range(n0, n1):
        stage, kin = divmod(n, 4)
        s = n % 28
        nt = ntiles_of(n)
        if kin == 0 and n > 0:
            if stage + 1 <= 20:
                assert a.vm_ops.count(("st", stage + 1)) == 2, (n, stage)
                if "nodma" not in common.DBG:
                    a.vm_wait(("st", stage + 1))
            if hook: hook(n, "pre")
            if common.STAMPS and common.FINE: stamp(a, 11 + stage - 1)
            if "nobar" not in common.DBG:
                a("s_barrier")
            if common.STAMPS and common.FINE: stamp(a, 37 + stage - 1)
            if hook: hook(n, "post")
        lim = 3 if n == 0 else (2 if n < 4 else 1)
        if "ffnlate" in common.DBG and 20 <= n < 28: lim = 2
        plan.issue(a, n, lim)
        if n + 2 < 84:
            tr_reads(a, n + 2, ntiles_of(n + 2))
        ahead = sum(2 * ntiles_of(m) for m in (n + 1, n + 2) if m < 84)
        a(f"s_waitcnt lgkmcnt({ahead})")
        for tt in range(nt):
            f = FB + 8 * (n % 3) + 4 * tt
            ac = acc + 16 * tt
            c = "0" if s == 0 else f"v[{ac}:{ac+15}]"
            x = XF + 4 * s
            a(f"v_mfma_f32_32x32x16_bf16 v[{ac}:{ac+15}], v[{f}:{f+3}], v[{x}:{x+3}], {c}")
            if fill is not None and n - n0 >= fill_start:
                emit_fill(a, fill, per)
                if "nofill" in common.DBG:
                    k = 0
                    while k < per and a.lines and not a.lines[-1].startswith("v_mfma"):
                        a.lines.pop(); k += 1
```

```python
import common
from common import *
from regs import *
_stamp = stamp
def stamp(a, i, real=False):
    if not common.FINE: _stamp(a, i, real)

vL = 0
def spin(a, label, load_lines, cmp_lines, vtmp, sleep=4):
    a(f"s_mov_b32 s{sCnt}, {SPIN_LIMIT}")
    a.label(label)
    for ln in load_lines: a(ln)
    a("s_waitcnt vmcnt(0)")
    for ln in cmp_lines: a(ln)
    a(f"""
    s_cbranch_vccz {label}_ok
    s_sub_u32 s{sCnt}, s{sCnt}, 1
    s_cbranch_scc1 {label}_ok
    s_sleep {sleep}
    s_branch {label}
    """)
    a.label(f"{label}_ok")


def wait_clear(a, label, vt, sleep=8):
    a(f"v_mov_b32 v{vt}, 0")
    spin(a, label,
         [f"global_load_dword v{vt+1}, v{vt}, s[{sDBG}:{sDBG+1}] sc1"],
         [f"v_cmp_ne_u32 vcc, 1, v{vt+1}"], vt, sleep)


def h_done(a, name, tag, vt):
    a(f"""
    v_mov_b32 v{vt}, {HCNT}
    v_mov_b32 v{vt+1}, 1
    s_mov_b64 exec, 1
    ds_add_rtn_u32 v{vt+1}, v{vt}, v{vt+1}
    s_waitcnt lgkmcnt(0)
    v_cmp_eq_u32 vcc, 7, v{vt+1}
    s_cbranch_vccz L_{name}_hd{tag}
    s_lshl_b32 s{sT1}, s{sRB}, 4
    s_add_u32 s{sT1}, s{sT1}, s{sG}
    s_lshl_b32 s{sT1}, s{sT1}, 2
    s_add_u32 s{sT1}, s{sT1}, {hex(WS_HF)}
    v_mov_b32 v{vt}, 0
    v_mov_b32 v{vt+1}, 1
    buffer_store_dword v{vt+1}, v{vt}, s[{sWS}:{sWS+3}], s{sT1} offen sc1
    """)
    a.label(f"L_{name}_hd{tag}")
    a("s_mov_b64 exec, -1")


def wait_qkv(a, label, sleep_clr, sleep_q):
    wait_clear(a, label + "clr", TT, sleep_clr)
    a(f"""
    v_lshlrev_b32 v{TT+4}, 4, v{vL}
    s_mov_b32 s{sT3}, {hex(WS_QF)}
    s_mov_b32 exec_lo, -1
    s_mov_b32 exec_hi, 0x00ffffff
    """)
    spin(a, label + "q",
         [f"buffer_load_dwordx4 v[{TT}:{TT+3}], v{TT+4}, s[{sWS}:{sWS+3}], s{sT3} offen sc1"],
         [f"v_and_b32 v{TT}, v{TT}, v{TT+1}", f"v_and_b32 v{TT+2}, v{TT+2}, v{TT+3}",
          f"v_and_b32 v{TT}, v{TT}, v{TT+2}", f"v_cmp_ne_u32 vcc, 1, v{TT}"], TT, sleep_q)
    a("s_mov_b64 exec, -1")


vL16, vVo0, vVo1, vT, vKo = 1, 2, 3, 4, 8
QF = 16
KB = 48
VB = 64
OAS = (80, 96, 112, 160)
PB = 128
SB = 176
R = 176
TT = 208
RED = 61440


def load_k(a, buf, soff):
    for sp in range(2):
        r = KB + 8 * buf + 4 * sp
        a(f"buffer_load_dwordx4 v[{r}:{r+3}], v{vKo}, s[{sWS}:{sWS+3}], s{soff} offen offset:{sp*1024} sc1")


def load_v(a, buf, soff):
    a(f"s_mov_b64 exec, s[{sMask}:{sMask+1}]")
    for sq in range(2):
        r = VB + 8 * buf + 4 * sq
        a(f"buffer_load_dwordx4 v[{r}:{r+3}], v{vVo0+sq}, s[{sWS}:{sWS+3}], s{soff} offen sc1")
    a("s_mov_b64 exec, -1")


def mfma_s(a, n, half):
    S_ = SB + 16 * (n & 1)
    k = KB + 8 * ((n >> 2) & 1) + 4 * half
    q = QF + 8 * (n & 3) + 4 * half
    c = "0" if half == 0 else f"v[{S_}:{S_+15}]"
    a(f"v_mfma_f32_32x32x16_bf16 v[{S_}:{S_+15}], v[{k}:{k+3}], v[{q}:{q+3}], {c}")


def mfma_pv(a, n, half):
    O = OAS[n & 3]
    v = VB + 8 * ((n >> 2) & 1) + 4 * half
    p = PB + 8 * (n & 1) + 4 * half
    a(f"v_mfma_f32_32x32x16_bf16 v[{O}:{O+15}], v[{v}:{v+3}], v[{p}:{p+3}], v[{O}:{O+15}]")


def expgrp(a, n, g):
    S_ = SB + 16 * (n & 1) + 4 * g
    P = PB + 8 * (n & 1) + 2 * g
    for r in range(4):
        a(f"v_exp_f32 v{S_+r}, v{S_+r}")
    a(f"v_cvt_pk_bf16_f32 v{P}, v{S_}, v{S_+1}")
    a(f"v_cvt_pk_bf16_f32 v{P+1}, v{S_+2}, v{S_+3}")


def attention_start(a, name):
    a(f"""
    s_and_b32 s{sT1}, s{sI}, 1
    s_lshl_b32 s{sH}, s{sXCD}, 1
    s_add_u32 s{sH}, s{sH}, s{sT1}
    s_lshr_b32 s{sRBA}, s{sI}, 1
    s_mul_i32 s{sU0}, s{sXCD}, 7
    s_mul_i32 s{sT2}, s{sT1}, 3
    s_add_u32 s{sU0}, s{sU0}, s{sT2}
    v_lshlrev_b32 v{vL16}, 4, v{vL}
    s_mov_b32 s{sMask}, 0x0fffffff
    s_mov_b32 s{sMask+1}, 0x0fffffff
    s_lshl_b32 s{sT0}, s{sRBA}, 2
    s_mul_i32 s{sT0}, s{sT0}, 28672
    s_lshl_b32 s{sT1}, s{sU0}, 9
    s_add_u32 s{sT0}, s{sT0}, s{sT1}
    s_add_u32 s{sT0}, s{sT0}, {hex(WS_Q)}
    """)
    for q in range(4):
        for sp in range(2):
            r = QF + 8 * q + 4 * sp
            a(f"buffer_load_dwordx4 v[{r}:{r+3}], v{vL16}, s[{sWS}:{sWS+3}], s{sT0} offen offset:{sp*1024} sc1")
        if q < 3:
            a(f"s_add_u32 s{sT0}, s{sT0}, 28672")
    a(f"""
    s_mul_i32 s{sKst}, s{sW}, {16*28672}
    s_add_u32 s{sKend}, s{sKst}, {16*28672}
    s_and_b32 s{sT0}, s{sRBA}, {'0' if "norot" in common.DBG else '7'}
    s_mul_i32 s{sT0}, s{sT0}, {2*28672}
    s_add_u32 s{sT0}, s{sT0}, s{sKst}
    s_add_u32 s{sA}, s{sT0}, 28672
    s_add_u32 s{sB}, s{sT0}, {2*28672}
    s_cmp_eq_u32 s{sB}, s{sKend}
    s_cselect_b32 s{sB}, s{sKst}, s{sB}
    s_lshl_b32 s{sT1}, s{sU0}, 9
    s_add_u32 s{sT1}, s{sT1}, {hex(WS_K)}
    v_add_u32 v{vKo}, s{sT1}, v{vL16}
    """)
    load_k(a, 0, sT0)
    a(f"""
    v_and_b32 v{vT}, 31, v{vL}
    v_lshrrev_b32 v{vT+1}, 5, v{vL}
    s_mul_i32 s{sT1}, s{sH}, 28
    v_add_u32 v{vT+2}, s{sT1}, v{vT}
    v_lshlrev_b32 v{vT+2}, 4, v{vT+2}
    v_mul_u32_u24 v{vT+3}, 7168, v{vT+1}
    v_add_u32 v{vVo0}, v{vT+2}, v{vT+3}
    v_add_u32 v{vVo0}, {hex(WS_V)}, v{vVo0}
    v_add_u32 v{vVo1}, 14336, v{vVo0}
    v_cmp_eq_u32 vcc, 28, v{vT}
    v_mov_b32 v{vT+1}, 0x3f803f80
    s_nop 0
    v_cndmask_b32 v{vT+1}, 0, v{vT+1}, vcc
    """)
    for r in range(16):
        a(f"v_mov_b32 v{VB+r}, v{vT+1}")
    load_v(a, 0, sT0)
    load_k(a, 1, sA)
    for o in OAS:
        for r in range(16):
            a(f"v_mov_b32 v{o+r}, 0")


def attention_main(a, name, with_h):
    nh = 2 if with_h else 0
    a("s_setprio 3")
    for r in range(8):
        a(f"v_mov_b32 v{PB+8+r}, 0")
    a(f"s_waitcnt vmcnt({6 + nh})")
    a(f"""
    s_and_b32 s{sT0}, s{sH}, 1
    s_cmp_eq_u32 s{sT0}, 0
    s_cbranch_scc0 L_{name}_odd
    s_mov_b32 exec_lo, 0
    """)
    for q in range(4):
        a(f"v_mov_b32 v{QF+8*q+6}, 0")
        a(f"v_mov_b32 v{QF+8*q+7}, 0")
    a(f"s_branch L_{name}_qz")
    a.label(f"L_{name}_odd")
    a("s_mov_b32 exec_hi, 0")
    for q in range(4):
        a(f"v_mov_b32 v{QF+8*q}, 0")
        a(f"v_mov_b32 v{QF+8*q+1}, 0")
    a.label(f"L_{name}_qz")
    a("s_mov_b64 exec, -1")
    a(f"s_waitcnt vmcnt({4 + nh})")
    stamp(a, 22)
    a("s_nop 1")
    mfma_s(a, 0, 0)
    mfma_s(a, 0, 1)
    a(f"s_mov_b32 s{sCnt}, 7")
    a("s_nop 7")
    a("s_nop 3")
    a(".p2align 5")
    a.label(f"L_{name}_loop")
    for n in range(8):
        if n == 1: load_v(a, 1, sA)
        if n == 3: load_k(a, 0, sB)
        if n == 5: load_v(a, 0, sB)
        if n == 6: a(f"s_add_u32 s{sA}, s{sB}, 28672")
        if n == 7:
            load_k(a, 1, sA)
            a(f"s_add_u32 s{sB}, s{sB}, {2*28672}")
        if n in (3, 7): a("s_waitcnt vmcnt(4)")
        if n == 3 and with_h:
            a(f"s_cmp_eq_u32 s{sCnt}, 7")
            a(f"s_cbranch_scc0 L_{name}_nh")
            h_done(a, name, "a", TT)
            a.label(f"L_{name}_nh")
        mfma_s(a, n + 1, 0)
        expgrp(a, n, 0)
        mfma_s(a, n + 1, 1)
        expgrp(a, n, 1)
        if n in (1, 5): a("s_waitcnt vmcnt(4)")
        mfma_pv(a, n - 1, 0)
        expgrp(a, n, 2)
        mfma_pv(a, n - 1, 1)
        expgrp(a, n, 3)
    a(f"""
    s_cmp_eq_u32 s{sB}, s{sKend}
    s_cselect_b32 s{sB}, s{sKst}, s{sB}
    s_sub_u32 s{sCnt}, s{sCnt}, 1
    s_cbranch_scc0 L_{name}_loop
    """)
    a("s_nop 1")
    mfma_pv(a, 7, 0)
    mfma_pv(a, 7, 1)
    stamp(a, 23)
    a(f"""
    s_lshl_b32 s{sT0}, s{sW}, 14
    s_add_u32 s{sT0}, s{sT0}, {RED}
    v_add_u32 v{vT}, s{sT0}, v{vL16}
    s_lshl_b32 s{sT0}, s{sW}, 12
    s_add_u32 s{sT0}, s{sT0}, {RED}
    v_add_u32 v{vT+1}, s{sT0}, v{vL16}
    s_barrier
    s_nop 7
    s_nop 3
    """)
    for q in range(4):
        for rq in range(4):
            r = OAS[q] + 4 * rq
            a(f"ds_write_b128 v{vT}, v[{r}:{r+3}] offset:{q*4096 + rq*1024}")
    a("s_waitcnt lgkmcnt(0)")
    a("s_barrier")
    for sw in range(4):
        for rq in range(4):
            r = OAS[sw] + 4 * rq
            a(f"ds_read_b128 v[{r}:{r+3}], v{vT+1} offset:{sw*16384 + rq*1024}")
    a("s_waitcnt lgkmcnt(8)")
    for r in range(16):
        a(f"v_add_f32 v{R+r}, v{OAS[0]+r}, v{OAS[1]+r}")
    a("s_waitcnt lgkmcnt(4)")
    for r in range(16):
        a(f"v_add_f32 v{R+r}, v{R+r}, v{OAS[2]+r}")
    a("s_waitcnt lgkmcnt(0)")
    a("s_barrier")
    for r in range(16):
        a(f"v_add_f32 v{R+r}, v{R+r}, v{OAS[3]+r}")
    stamp(a, 24)
    a(f"""
    v_mov_b32 v{TT}, v{R+12}
    v_mov_b32 v{TT+1}, v{R+12}
    s_nop 1
    v_permlane32_swap_b32 v{TT}, v{TT+1}
    s_nop 1
    v_rcp_f32 v{TT+1}, v{TT+1}
    s_nop 0
    """)
    for r in range(16):
        a(f"v_mul_f32 v{R+r}, v{TT+1}, v{R+r}")
    for r in range(8):
        a(f"v_cvt_pk_bf16_f32 v{TT+4+r}, v{R+2*r}, v{R+2*r+1}")
    a(f"""
    s_mov_b32 exec_lo, 0
    v_mov_b32 v{TT+4+6}, 0
    v_mov_b32 v{TT+4+7}, 0
    s_mov_b64 exec, -1
    s_lshl_b32 s{sT0}, s{sRBA}, 2
    s_add_u32 s{sT0}, s{sT0}, s{sW}
    s_lshl_b32 s{sT0}, s{sT0}, 4
    s_add_u32 s{sT0}, s{sT0}, s{sH}
    s_lshl_b32 s{sT1}, s{sT0}, 11
    s_add_u32 s{sT1}, s{sT1}, {hex(WS_O)}
    buffer_store_dwordx4 v[{TT+4}:{TT+7}], v{vL16}, s[{sWS}:{sWS+3}], s{sT1} offen sc1
    buffer_store_dwordx4 v[{TT+8}:{TT+11}], v{vL16}, s[{sWS}:{sWS+3}], s{sT1} offen offset:1024 sc1
    s_lshl_b32 s{sT0}, s{sT0}, 2
    s_add_u32 s{sT0}, s{sT0}, {hex(WS_OF)}
    v_mov_b32 v{TT}, 1
    v_mov_b32 v{TT+1}, 0
    s_waitcnt vmcnt(0)
    s_mov_b64 exec, 1
    buffer_store_dword v{TT}, v{TT+1}, s[{sWS}:{sWS+3}], s{sT0} offen sc1
    s_mov_b64 exec, -1
    """)
    stamp(a, 25)


WO_IMG = 0
W2_RING = 61440
NSL = 12
PD = 6

gL16, gD, gTr, gTo, gT = 1, 2, 3, 5, 7
gXo = 12
HB = 16
FB = 72
ACC = 88
XR = 152
GT = 160


def g_issue_w2(a, j):
    for q in range(2):
        a(f"s_add_u32 m0, s{sM0}, {(j % NSL)*2048 + q*1024}")
        a(f"s_add_u32 s{sT0}, s{sD}, {q*8*896}")
        a.vm(f"buffer_load_dwordx4 v{gD}, s[{sW2}:{sW2+3}], s{sT0} offen lds", ("w", j))
    a(f"""
    s_add_u32 s{sD}, s{sD}, {16*896}
    s_add_u32 s{sKo}, s{sKo}, 1
    s_cmp_eq_u32 s{sKo}, 28
    s_cselect_b32 s{sT1}, {28*16*896}, 0
    s_cselect_b32 s{sKo}, 0, s{sKo}
    s_sub_u32 s{sD}, s{sD}, s{sT1}
    """)


def g_issue_h(a, j):
    hb = HB + 8 * (j % 7)
    for rt in range(2):
        a.vm(f"buffer_load_dwordx4 v[{hb+4*rt}:{hb+4*rt+3}], v{gL16}, s[{sWS}:{sWS+3}], s{sH0+rt} offen sc1", ("h", j))
    a(f"""
    s_add_u32 s{sH0}, s{sH0}, 1024
    s_add_u32 s{sR2}, s{sR2}, 1
    s_cmp_eq_u32 s{sR2}, 28
    s_cselect_b32 s{sT1}, {28*1024}, 0
    s_cselect_b32 s{sR2}, 0, s{sR2}
    s_sub_u32 s{sH0}, s{sH0}, s{sT1}
    s_add_u32 s{sH1}, s{sH0}, {112*1024}
    """)


def g_issue_o(a, jj):
    hb = HB + 8 * (jj % 7) if jj < 7 else GT + 8
    for rt in range(2):
        a.vm(f"buffer_load_dwordx4 v[{hb+4*rt}:{hb+4*rt+3}], v{gL16}, s[{sWS}:{sWS+3}], s{sO0+rt} offen offset:{(jj % 4)*1024} sc1", ("o", jj))
    if jj % 4 == 3:
        a(f"s_add_u32 s{sO0}, s{sO0}, 4096")
        a(f"s_add_u32 s{sO1}, s{sO1}, 4096")


def g_tr(a, j, wo=False):
    fb = FB + 8 * (j % 2)
    for ct in range(2):
        if not wo:
            reg, off = gTr + ct, (j % NSL) * 2048
        else:
            hh, sq = divmod(j, 2)
            reg, off = gTo + ct, (28 * hh + 16 * sq) * 128
        a(f"ds_read_b64_tr_b16 v[{fb+4*ct}:{fb+4*ct+1}], v{reg} offset:{off}")
        a(f"ds_read_b64_tr_b16 v[{fb+4*ct+2}:{fb+4*ct+3}], v{reg} offset:{off+1024}")


def g_mfma(a, hb, fb, first):
    for rt in range(2):
        for ct in range(2):
            acc = ACC + 16 * (2 * rt + ct)
            c = "0" if first else f"v[{acc}:{acc+15}]"
            a(f"v_mfma_f32_32x32x16_bf16 v[{acc}:{acc+15}], v[{fb+4*ct}:{fb+4*ct+3}], v[{hb+4*rt}:{hb+4*rt+3}], {c}")


def gemm(a, name):
    a.vm_ops = []
    a(f"""
    s_sub_u32 s{sGW}, s{sW}, 4
    s_lshl_b32 s{sRP}, s{sXCD}, 2
    s_and_b32 s{sT1}, s{sI}, 3
    s_add_u32 s{sRP}, s{sRP}, s{sT1}
    s_lshr_b32 s{sCG}, s{sI}, 2
    s_lshl_b32 s{sT1}, s{sT1}, 1
    s_add_u32 s{sT1}, s{sT1}, s{sCG}
    s_cmp_ge_u32 s{sT1}, 7
    s_cselect_b32 s{sT2}, 7, 0
    s_sub_u32 s{sT1}, s{sT1}, s{sT2}
    s_lshl_b32 s{sR2}, s{sT1}, 2
    {'s_mov_b32 s%d, 0' % sR2 if "nogrot" in common.DBG else ''}
    s_mov_b32 s{sKo}, s{sR2}
    v_lshlrev_b32 v{gL16}, 4, v{vL}
    """)
    srd(a, sW2, sP + 12, F * D * 2)
    srd(a, sWO, sP + 4, D * D * 2)
    srd(a, sOUT, sP + 14, S * D * 2)
    t0, t1, t2, t3, t4, t5 = GT, GT + 1, GT + 2, GT + 3, GT + 4, GT + 5
    a(f"""
    v_lshrrev_b32 v{t0}, 3, v{vL}
    v_and_b32 v{t1}, 7, v{vL}
    v_bfe_u32 v{t2}, v{vL}, 4, 1
    v_lshlrev_b32 v{t2}, 2, v{t2}
    v_xor_b32 v{t1}, v{t1}, v{t2}
    v_lshlrev_b32 v{t1}, 4, v{t1}
    v_mul_u32_u24 v{t0}, 896, v{t0}
    v_add_u32 v{gD}, v{t0}, v{t1}
    s_mul_i32 s{sM0}, s{sGW}, 24576
    s_add_u32 s{sM0}, s{sM0}, {W2_RING}
    s_lshl_b32 s{sT1}, s{sCG}, 7
    s_mul_i32 s{sD}, s{sGW}, 28
    s_add_u32 s{sD}, s{sD}, s{sR2}
    s_mul_i32 s{sD}, s{sD}, {16*896}
    s_add_u32 s{sD}, s{sD}, s{sT1}
    """)
    for j in range(PD):
        g_issue_w2(a, j)
    a(f"""
    s_lshl_b32 s{sT0}, s{sRP}, 1
    s_mul_i32 s{sH0}, s{sT0}, {112*1024}
    s_mul_i32 s{sT1}, s{sGW}, 28
    s_add_u32 s{sT1}, s{sT1}, s{sR2}
    s_lshl_b32 s{sT1}, s{sT1}, 10
    s_add_u32 s{sH0}, s{sH0}, s{sT1}
    s_add_u32 s{sH1}, s{sH0}, {112*1024}
    s_lshl_b32 s{sO0}, s{sT0}, 15
    s_lshl_b32 s{sT1}, s{sGW}, 13
    s_add_u32 s{sO0}, s{sO0}, s{sT1}
    s_add_u32 s{sO0}, s{sO0}, {hex(WS_O)}
    s_add_u32 s{sO1}, s{sO0}, 32768
    """)
    a(f"""
    v_bfe_u32 v{t0}, v{vL}, 2, 2
    v_lshrrev_b32 v{t1}, 5, v{vL}
    v_bfe_u32 v{t2}, v{vL}, 4, 1
    v_bfe_u32 v{t3}, v{vL}, 1, 1
    v_and_b32 v{t4}, 1, v{vL}
    v_lshl_add_u32 v{t5}, v{t1}, 2, v{t0}
    v_lshlrev_b32 v{t5}, 7, v{t5}
    v_lshl_add_u32 v{t5}, v{t4}, 3, v{t5}
    v_lshl_add_u32 v{t2}, v{t2}, 1, v{t3}
    v_lshrrev_b32 v{t0}, 1, v{t0}
    v_lshlrev_b32 v{t0}, 2, v{t0}
    s_mul_i32 s{sT3}, s{sGW}, 15360
    """)
    for ct in range(2):
        a(f"""
        v_add_u32 v{t3}, {4*ct}, v{t2}
        v_xor_b32 v{t3}, v{t3}, v{t0}
        v_lshl_add_u32 v{t3}, v{t3}, 4, v{t5}
        v_add_u32 v{gTr+ct}, s{sM0}, v{t3}
        v_add_u32 v{gTo+ct}, s{sT3}, v{t3}
        """)
    a(f"""
    s_lshr_b32 s{sT0}, s{sGW}, 1
    s_lshl_b32 s{sT1}, s{sRP}, 1
    s_add_u32 s{sT0}, s{sT0}, s{sT1}
    s_lshl_b32 s{sT0}, s{sT0}, 5
    s_mul_i32 s{sT0}, s{sT0}, 896
    s_lshl_b32 s{sT1}, s{sCG}, 7
    s_add_u32 s{sT0}, s{sT0}, s{sT1}
    s_and_b32 s{sT1}, s{sGW}, 1
    s_lshl_b32 s{sT1}, s{sT1}, 6
    s_add_u32 s{sT0}, s{sT0}, s{sT1}
    v_and_b32 v{t0}, 31, v{vL}
    v_mul_u32_u24 v{t0}, 896, v{t0}
    v_add_u32 v{t0}, s{sT0}, v{t0}
    v_lshl_add_u32 v{gXo}, v{t1}, 3, v{t0}
    v_lshl_add_u32 v{gXo+1}, v{t1}, 4, v{t0}
    """)
    stamp(a, 30)
    a(f"""
    s_lshr_b32 s{sT3}, s{sRP}, 1
    s_lshl_b32 s{sT3}, s{sT3}, 6
    s_add_u32 s{sT3}, s{sT3}, {hex(WS_HF)}
    v_lshlrev_b32 v{GT}, 2, v{vL}
    s_mov_b64 exec, 0x3fff
    """)
    spin(a, f"L_{name}_gh",
         [f"buffer_load_dword v{GT+1}, v{GT}, s[{sWS}:{sWS+3}], s{sT3} offen sc1"],
         [f"v_cmp_ne_u32 vcc, 1, v{GT+1}"], GT)
    a("s_mov_b64 exec, -1")
    a.vm_ops = []
    stamp(a, 31)
    for j in range(PD):
        g_issue_h(a, j)
    g_tr(a, 0)
    NK = 28 if "nogemm" not in common.DBG else 1
    for j in range(NK):
        if j + PD < NK:
            g_issue_h(a, j + PD)
            g_issue_w2(a, j + PD)
        if j + 1 < NK:
            if j + 1 >= PD:
                a.vm_wait(("w", j + 1))
            g_tr(a, j + 1)
            if j + 1 < PD:
                a.vm_wait(("h", j))
            a("s_waitcnt lgkmcnt(4)")
        else:
            a.vm_wait(("h", j))
            a("s_waitcnt lgkmcnt(0)")
        g_mfma(a, HB + 8 * (j % 7), FB + 8 * (j % 2), j == 0)
    stamp(a, 32)
    a(f"""
    s_mul_i32 s{sT2}, s{sGW}, {112*896}
    s_lshl_b32 s{sT1}, s{sCG}, 7
    s_add_u32 s{sT2}, s{sT2}, s{sT1}
    s_mul_i32 s{sT3}, s{sGW}, 15360
    """)
    for q in range(15):
        a(f"s_add_u32 m0, s{sT3}, {q*1024}")
        a(f"s_add_u32 s{sT0}, s{sT2}, {q*8*896}")
        a.vm(f"buffer_load_dwordx4 v{gD}, s[{sWO}:{sWO+3}], s{sT0} offen lds", ("wo", q))
    for i in range(4):
        a.vm(f"buffer_load_dwordx2 v[{XR+2*i}:{XR+2*i+1}], v{gXo}, s[{sX}:{sX+3}], 0 offen offset:{16*i}", ("x", i))
    a("s_barrier")
    a("s_barrier")
    a("s_barrier")
    stamp(a, 33)
    a(f"""
    s_lshl_b32 s{sT3}, s{sRP}, 7
    s_add_u32 s{sT3}, s{sT3}, {hex(WS_OF)}
    v_lshlrev_b32 v{GT}, 2, v{vL}
    s_mov_b32 exec_lo, -1
    s_mov_b32 exec_hi, 0
    """)
    spin(a, f"L_{name}_go",
         [f"buffer_load_dword v{GT+1}, v{GT}, s[{sWS}:{sWS+3}], s{sT3} offen sc1"],
         [f"v_cmp_ne_u32 vcc, 1, v{GT+1}"], GT)
    a("s_mov_b64 exec, -1")
    a.vm_ops = []
    stamp(a, 34)
    for jj in range(8):
        g_issue_o(a, jj)
    g_tr(a, 0, wo=True)
    for jj in range(8):
        if jj + 1 < 8:
            g_tr(a, jj + 1, wo=True)
            a.vm_wait(("o", jj))
            a("s_waitcnt lgkmcnt(4)")
        else:
            a.vm_wait(("o", jj))
            a("s_waitcnt lgkmcnt(0)")
        hb = HB + 8 * jj if jj < 7 else GT + 8
        g_mfma(a, hb, FB + 8 * (jj % 2), False)
    stamp(a, 35)
    a(f"""
    s_lshl_b32 s{sT0}, s{sGW}, 14
    s_add_u32 s{sT0}, s{sT0}, {RED}
    v_add_u32 v{gT}, s{sT0}, v{gL16}
    s_lshl_b32 s{sT0}, s{sGW}, 12
    s_add_u32 s{sT0}, s{sT0}, {RED}
    v_add_u32 v{gT+1}, s{sT0}, v{gL16}
    s_nop 7
    s_nop 3
    """)
    for q in range(4):
        for rq in range(4):
            r = ACC + 16 * q + 4 * rq
            a(f"ds_write_b128 v{gT}, v[{r}:{r+3}] offset:{q*4096 + rq*1024}")
    a("s_waitcnt lgkmcnt(0)")
    a("s_barrier")
    for sw in range(4):
        for rq in range(4):
            r = ACC + 16 * sw + 4 * rq
            a(f"ds_read_b128 v[{r}:{r+3}], v{gT+1} offset:{sw*16384 + rq*1024}")
    Rr = HB
    a("s_waitcnt lgkmcnt(8)")
    for r in range(16):
        a(f"v_add_f32 v{Rr+r}, v{ACC+r}, v{ACC+16+r}")
    a("s_waitcnt lgkmcnt(4)")
    for r in range(16):
        a(f"v_add_f32 v{Rr+r}, v{Rr+r}, v{ACC+32+r}")
    a("s_waitcnt lgkmcnt(0)")
    for r in range(16):
        a(f"v_add_f32 v{Rr+r}, v{Rr+r}, v{ACC+48+r}")
    for i in range(4):
        for h in range(2):
            x = XR + 2 * i + h
            a(f"v_lshlrev_b32 v{GT}, 16, v{x}")
            a(f"v_and_b32 v{GT+1}, 0xffff0000, v{x}")
            a(f"v_add_f32 v{Rr+4*i+2*h}, v{Rr+4*i+2*h}, v{GT}")
            a(f"v_add_f32 v{Rr+4*i+2*h+1}, v{Rr+4*i+2*h+1}, v{GT+1}")
    for r in range(8):
        a(f"v_cvt_pk_bf16_f32 v{GT+4+r}, v{Rr+2*r}, v{Rr+2*r+1}")
    a("s_nop 1")
    for ii in range(2):
        b = GT + 4 + 4 * ii
        a(f"v_permlane32_swap_b32 v{b}, v{b+2}")
        a(f"v_permlane32_swap_b32 v{b+1}, v{b+3}")
    for ii in range(2):
        b = GT + 4 + 4 * ii
        a(f"buffer_store_dwordx4 v[{b}:{b+3}], v{gXo+1}, s[{sOUT}:{sOUT+3}], 0 offen offset:{32*ii}")
    stamp(a, 36)
```

```python
sWS, sX, sWQ, sWF = 4, 8, 12, 16
sW2, sWO = 12, 16
sOUT = 20
sDBG = 24
sW, sXCD, sI, sRB, sG, sROT, sRT, sCH, sQ4, sRTg = 26, 27, 28, 29, 30, 31, 32, 33, 34, 35
sT0, sT1, sT2, sT3 = 36, 37, 38, 39
sP = 40
sKB = 60
sRq, sRf = 67, 74
sXo0, sXo1, sM0, sSt0, sSt1, sHst = 81, 82, 83, 84, 85, 86
sTq, sSc = 87, 89
sCnt, sMask = 91, 92
sH, sRBA, sU0, sA, sB = 60, 61, 62, 63, 64
sKst, sKend = 65, 66
sRP, sCG, sH0, sH1, sD, sO0, sO1, sR2, sGW, sKo = 65, 66, 67, 68, 69, 70, 71, 72, 73, 74
HCNT = 163328
```

```python
import sys
from asmlib import Asm, check_hazards
import common
from common import *
from regs import *
import fa, fb

NAME = "parallel_sum__softmax_full_mha__glu_gated_swiglu__prompt"
KNAME = NAME + "_kernel"
LDS = 163840


def flag_store(a, soff_reg, vz, vone):
    a(f"buffer_store_dword v{vone}, v{vz}, s[{sWS}:{sWS+3}], s{soff_reg} offen sc1")


def clear_all_flags(a, name):
    a(f"""
    s_cmp_eq_u32 s2, 224
    s_cbranch_scc0 L_{name}_noclr
    s_cmp_eq_u32 s{sW}, 0
    s_cbranch_scc0 L_{name}_noclr
    v_lshlrev_b32 v1, 4, v{fa.vL}
    v_mov_b32 v4, 0
    v_mov_b32 v5, 0
    v_mov_b32 v6, 0
    v_mov_b32 v7, 0
    s_mov_b32 s{sT1}, {hex(WS_FLAGS)}
    """)
    for q in range(12):
        a(f"buffer_store_dwordx4 v[4:7], v1, s[{sWS}:{sWS+3}], s{sT1} offen sc1")
        if q < 11:
            a(f"s_add_u32 s{sT1}, s{sT1}, 1024")
    a(f"""
    s_waitcnt vmcnt(0)
    s_mov_b64 exec, 1
    v_mov_b32 v5, 1
    global_store_dword v4, v5, s[{sDBG}:{sDBG+1}] sc1
    s_mov_b64 exec, -1
    """)
    a.label(f"L_{name}_noclr")


def set_flag_body(a, base, mul, add_reg):
    a(f"""
    s_mov_b64 exec, 1
    s_mul_i32 s{sT1}, s{sRB}, {mul}
    s_add_u32 s{sT1}, s{sT1}, s{add_reg}
    s_lshl_b32 s{sT1}, s{sT1}, 2
    s_add_u32 s{sT1}, s{sT1}, {hex(base)}
    v_mov_b32 v3, 0
    v_mov_b32 v4, 1
    """)
    flag_store(a, sT1, 3, 4)
    a("s_mov_b64 exec, -1")


def set_flag(a, name, tag, base, mul, add_reg):
    T = fa.T
    a(f"""
    s_cmp_eq_u32 s{sW}, 0
    s_cbranch_scc0 L_{name}_set{tag}
    s_mov_b64 exec, 1
    s_mul_i32 s{sT1}, s{sRB}, {mul}
    s_add_u32 s{sT1}, s{sT1}, s{add_reg}
    s_lshl_b32 s{sT1}, s{sT1}, 2
    s_add_u32 s{sT1}, s{sT1}, {hex(base)}
    v_mov_b32 v{T+22}, 0
    v_mov_b32 v{T+23}, 1
    """)
    flag_store(a, sT1, T + 22, T + 23)
    a("s_mov_b64 exec, -1")
    a.label(f"L_{name}_set{tag}")


def gen(name=KNAME):
    a = Asm()
    T = fa.T
    if common.STAMPS:
        a(f"v_mov_b32 v{vSTAMP}, 0")
    stamp(a, 0, real=True)
    stamp(a, 1)
    a(f"""
    s_cmp_ge_u32 s2, 256
    s_cbranch_scc1 L_{name}_end
    s_load_dwordx16 s[{sP}:{sP+15}], s[0:1], 0
    s_load_dwordx4 s[{sP+16}:{sP+19}], s[0:1], 64
    """)
    fa.roles(a)
    a("s_waitcnt lgkmcnt(0)")
    srd(a, sX, sP, S * D * 2)
    srd(a, sWS, sP + 18, WS_SIZE)
    a(f"s_mov_b32 s{sDBG}, s{sP+16}")
    a(f"s_mov_b32 s{sDBG+1}, s{sP+17}")
    a(f"s_cmp_ge_u32 s{sI}, 28")
    a(f"s_cbranch_scc1 L_{name}_helper")
    fa.x_loads(a)
    stamp(a, 2)
    srd(a, sWQ, sP + 2, D * 3 * D * 2)
    a(f"""
    s_and_b32 s{sT1}, s{sW}, 3
    s_cmp_ge_u32 s{sT1}, 2
    s_cselect_b32 s{sWF}, s{sP+10}, s{sP+8}
    s_cselect_b32 s{sT1}, s{sP+11}, s{sP+9}
    s_and_b32 s{sWF+1}, s{sT1}, 0xffff
    s_mov_b32 s{sWF+2}, {D*F*2}
    s_mov_b32 s{sWF+3}, {hex(SRD3)}
    """)
    fa.addr_setup(a)
    fa.addr_setup2(a)
    a(f"""
    s_mul_i32 s{sT1}, s{sRTg}, 112
    s_lshl_b32 s{sT2}, s{sG}, 3
    s_add_u32 s{sT1}, s{sT1}, s{sT2}
    s_lshl_b32 s{sT2}, s{sCH}, 1
    s_add_u32 s{sT1}, s{sT1}, s{sT2}
    s_lshl_b32 s{sHst}, s{sT1}, 10
    """)
    stamp(a, 3)

    def hook(gq, part):
        if gq == 0 and part == 1:
            fa.dma_prologue(a, name)
    fa.layernorm(a, hook)
    a("s_waitcnt lgkmcnt(0)")
    stamp(a, 4)
    a("s_barrier")
    fa.read_frags(a)
    a("s_waitcnt vmcnt(0)")
    a("s_barrier")
    stamp(a, 5)
    a.vm_ops = [("st", 2)]
    plan = fa.DmaPlan()

    def bhook(n, when):
        if n == 44 and when == "post":
            a(f"""
            s_cmp_eq_u32 s{sW}, 0
            s_cbranch_scc0 L_{name}_e44
            v_mov_b32 v3, {HCNT}
            v_mov_b32 v4, 0
            ds_write_b32 v3, v4
            """)
            a.label(f"L_{name}_e44")
        if n == 48 and when == "pre":
            a.vm_wait_mark("qkv")
        if n == 48 and when == "post":
            a(f"""
            s_cmp_eq_u32 s{sW}, 0
            s_cbranch_scc0 L_{name}_setq
            v_cmp_ne_u32 vcc, 1, v2
            s_cbranch_vccz L_{name}_clrok
            """)
            fb.wait_clear(a, f"L_{name}_clrq", 1)
            a.label(f"L_{name}_clrok")
            a.label_alias = None
            set_flag_body(a, WS_QF, 14, sG)
            a.label(f"L_{name}_setq")
        if n == 76 and when == "post":
            a(f"""
            s_cmp_eq_u32 s{sCH}, 0
            s_cbranch_scc0 L_{name}_e76
            v_lshlrev_b32 v1, 4, v{fa.vL}
            s_mov_b32 s{sT3}, {hex(WS_QF)}
            buffer_load_dwordx4 v[2:5], v1, s[{sWS}:{sWS+3}], s{sT3} offen sc1
            """)
            a.label(f"L_{name}_e76")

    a(f"s_cmp_eq_u32 s{sCH}, 0")
    a(f"s_cbranch_scc0 L_{name}_q1")
    saved, pend = list(a.vm_ops), list(plan.pending)
    for nt in (2, 1):
        if nt == 1:
            a.label(f"L_{name}_q1")
            a.vm_ops, plan.pending = list(saved), list(pend)
        nto = lambda n, nt=nt: nt if n < 28 else 2
        fa.tr_reads(a, 0, nto(0))
        fa.tr_reads(a, 1, nto(1))
        fa.ksteps(a, plan, 0, 28, nto, fa.A0)
        if nt == 2:
            a(f"s_branch L_{name}_ffn")
    a.label(f"L_{name}_ffn")
    stamp(a, 6)
    nto = lambda n: 2
    fill = fa.qkv_common(fa.A0)
    fa.ksteps(a, plan, 28, 36, nto, fa.A1, fill=fill, fill_start=2, per=5, hook=bhook)
    assert not fill, len(fill)
    a(f"""
    s_cmp_eq_u32 s{sW}, 0
    s_cbranch_scc0 L_{name}_e36
    v_mov_b32 v1, 0
    global_load_dword v2, v1, s[{sDBG}:{sDBG+1}] sc1
    """)
    a.label(f"L_{name}_e36")
    fa.qkv_tails(a, name)
    fa.ksteps(a, plan, 36, 56, lambda n: 2, fa.A1, hook=bhook)
    stamp(a, 7)
    fill = fa.ffn_epi(fa.A1, 0)
    fa.ksteps(a, plan, 56, 76, nto, fa.A0, fill=fill, fill_start=2, per=4, hook=bhook)
    assert not fill, len(fill)
    fa.ksteps(a, plan, 76, 84, nto, fa.A0, hook=bhook)
    stamp(a, 8)
    a("s_barrier")
    a(f"s_cmp_ge_u32 s{sW}, 4")
    a(f"s_cbranch_scc1 L_{name}_gemm_a")
    a("s_waitcnt vmcnt(0)")
    a(f"""
    v_and_b32 v2, v2, v3
    v_and_b32 v4, v4, v5
    v_and_b32 v2, v2, v4
    s_mov_b32 exec_hi, 0x00ffffff
    v_cmp_ne_u32 vcc, 1, v2
    s_mov_b64 exec, -1
    s_cbranch_vccz L_{name}_qok
    """)
    fb.wait_qkv(a, f"L_{name}_a", 8, 8)
    a.label(f"L_{name}_qok")
    fb.attention_start(a, name)
    a("s_nop 3")
    fill = fa.ffn_epi(fa.A0, 1)
    fa.emit_fill(a, fill, len(fill))
    stamp(a, 9)
    fb.attention_main(a, name, True)
    a(f"s_branch L_{name}_exit")
    a.label(f"L_{name}_gemm_a")
    a("s_nop 7")
    a("s_nop 3")
    fill = fa.ffn_epi(fa.A0, 1)
    fa.emit_fill(a, fill, len(fill))
    stamp(a, 9)
    a("s_waitcnt vmcnt(0)")
    fb.h_done(a, name, "g", 1)
    stamp(a, 10)
    fb.gemm(a, name)
    a(f"s_branch L_{name}_exit")
    a.label(f"L_{name}_helper")
    clear_all_flags(a, name)
    a(f"s_cmp_ge_u32 s{sW}, 4")
    a(f"s_cbranch_scc1 L_{name}_exit")
    a(f"s_cmp_eq_u32 s{sW}, 0")
    a(f"s_cbranch_scc0 L_{name}_hwait")
    fb.wait_qkv(a, f"L_{name}_h", 16, 32)
    a.label(f"L_{name}_hwait")
    a("s_barrier")
    fb.attention_start(a, name + "h")
    fb.attention_main(a, name + "h", False)
    a.label(f"L_{name}_exit")
    if common.STAMPS:
        a("s_waitcnt vmcnt(0)")
        stamp(a, 62)
        stamp(a, 63, real=True)
        stamp_flush(a, sWS, sW, 1, fa.vL)
    a.label(f"L_{name}_end")
    a("s_endpgm")
    return a


HEAD = open("cdna_kernels/%s.s.ref" % NAME).read().split("; Override launch")[0]


def build():
    a = gen()
    t = a.text()
    probs = check_hazards(t, "fused")
    for p in probs[:40]:
        print(p)
    if probs:
        raise SystemExit(f"{len(probs)} hazard problems")
    out = HEAD + f"; @launch grid=(256,1,1) block=(512,1,1) lds={LDS}\n"
    out += '.amdgcn_target "amdgcn-amd-amdhsa--gfx950"\n.text\n'
    out += kernel_header(KNAME) + t
    out += '.section .rodata,"a"\n.p2align 6\n' + kernel_desc(KNAME, 256, 256)
    return out


if __name__ == "__main__":
    if "--stamps" in sys.argv:
        sys.argv.remove("--stamps")
        common.STAMPS = True
    if "--fine" in sys.argv:
        sys.argv.remove("--fine")
        common.FINE = True
    for x in list(sys.argv):
        if x.startswith("--dbg="):
            sys.argv.remove(x)
            common.DBG = set(x[6:].split(","))
    dst = sys.argv[1] if len(sys.argv) > 1 else "cdna_kernels/%s.s" % NAME
    open(dst, "w").write(build())
    print("wrote", dst)
```
